```python
import torch

def _softmax(x, axis=-1):
    return torch.softmax(x, dim=axis)
def _gelu(x):
    return torch.nn.functional.gelu(x, approximate="tanh")
def _silu(x):
    return torch.nn.functional.silu(x)
def _sigmoid(x):
    return torch.sigmoid(x)
def _layernorm(x, axis=-1, eps=1e-5):
    m = x.mean(dim=axis, keepdim=True)
    v = x.var(dim=axis, keepdim=True, unbiased=False)
    return (x - m) / torch.sqrt(v + eps)
def _scatter_add(tgt, idx, src, axis=0):
    return tgt.clone().index_add_(axis, idx, src)
def _segment_sum(src, seg, n):
    out = torch.zeros((n,) + src.shape[1:], dtype=src.dtype)
    return out.index_add_(0, seg, src)
def _pad(x, pw):
    flat = tuple(v for pair in reversed(pw) for v in pair)
    return torch.nn.functional.pad(x, flat)

kernel_name = 'recurrent_scan__ssm_conv_h3__glu_gated_bilinear__prompt'

def setup_inputs():

    _w = (lambda a: (lambda t: t.to(torch.bfloat16) if t.is_floating_point() else t)(torch.as_tensor(a)))
    def _A_setup():
        B, S, D = 1, 2048, 576
        ks = 4
        return {
            "q": _w((lambda *s: torch.randn(*s, dtype=torch.bfloat16) * 0.05)(B, S, D)),
            "k": _w((lambda *s: torch.randn(*s, dtype=torch.bfloat16) * 0.8)(B, S, D)),
            "v": _w((lambda *s: torch.randn(*s, dtype=torch.bfloat16) * 0.8)(B, S, D)),
            "shift_k": _w((lambda *s: torch.randn(*s, dtype=torch.bfloat16) * 0.8)(D, ks) * 0.5),
            "ssm_k": _w((lambda *s: torch.randn(*s, dtype=torch.bfloat16) * 0.8)(D, S) * (1.0 / S ** 0.5)),
            "ssm_D": _w((lambda *s: torch.randn(*s, dtype=torch.bfloat16) * 0.8)(D)),
        }
    _A_in = _A_setup()

    def _B_setup():
        B, S, D, F = 1, 2048, 576, 4608
        return {
            "x": _w((lambda *s: torch.randn(*s, dtype=torch.bfloat16) * 0.05)(B, S, D)),
            "w_gate": _w((lambda *s: torch.randn(*s, dtype=torch.bfloat16) * 0.2)(D, F) * (D ** -0.5)),
            "w_up": _w((lambda *s: torch.randn(*s, dtype=torch.bfloat16) * 0.2)(D, F) * (D ** -0.5)),
            "w_down": _w((lambda *s: torch.randn(*s, dtype=torch.bfloat16) * 0.2)(F, D) * (F ** -0.5)),
        }
    _B_in = _B_setup()

    return {
        "A_q": _A_in["q"],
        "A_k": _A_in["k"],
        "A_v": _A_in["v"],
        "A_shift_k": _A_in["shift_k"],
        "A_ssm_k": _A_in["ssm_k"],
        "A_ssm_D": _A_in["ssm_D"],
        "B_x": _B_in["x"],
        "B_w_gate": _B_in["w_gate"],
        "B_w_up": _B_in["w_up"],
        "B_w_down": _B_in["w_down"],
    }

def reference(A_q, A_k, A_v, A_shift_k, A_ssm_k, A_ssm_D, B_x, B_w_gate, B_w_up, B_w_down):
    def _A_ref(q, k, v, shift_k, ssm_k, ssm_D):
        B, S, D = q.shape
        ks = shift_k.shape[-1]
        k_pad = _pad(k, ((0, 0), (ks - 1, 0), (0, 0)))
        k_shift = torch.zeros_like(k)
        for t in range(ks):
            k_shift = k_shift + k_pad[:, t:t + S, :] * shift_k[:, ks - 1 - t][None, None, :]
        kv = k_shift * v
        L = 2 * S
        kv_pad = _pad(kv, ((0, 0), (0, S), (0, 0)))
        kf_pad = _pad(ssm_k, ((0, 0), (0, S)))
        kv_f = (lambda x, axes=(-2,-1): torch.fft.rfft2(x.float(), dim=axes))(kv_pad[:, None, :, :], axes=(1, 2))
        kf_f = (lambda x, axes=(-2,-1): torch.fft.rfft2(x.float(), dim=axes))(kf_pad[:, None, :], axes=(1, 2))
        kf_f = (lambda x, *d: x.permute(*d))(kf_f, 1, 2, 0)
        y_f = kv_f * kf_f[None, :, :, :]
        y = (lambda x, s, axes=(-2,-1): torch.fft.irfft2(x, s=s, dim=axes).to(torch.bfloat16))(y_f, (1, L), axes=(1, 2))[:, 0, :S, :]
        y = y + kv * ssm_D[None, None, :]
        return q * y

    def _B_ref(x, w_gate, w_up, w_down):
        g = torch.einsum("bsd,df->bsf", x, w_gate)
        u = torch.einsum("bsd,df->bsf", x, w_up)
        h = g * u
        return torch.einsum("bsf,fd->bsd", h, w_down)

    x = A_q
    xn = _layernorm(x, axis=-1)
    s = _A_ref(xn, A_k, A_v, A_shift_k, A_ssm_k, A_ssm_D)
    g = _silu(_B_ref(xn, B_w_gate, B_w_up, B_w_down))
    return x + s * g
```

```python
import re

def regs_of(tok):
    tok = tok.strip()
    neg = tok.lstrip('-').strip()
    m = re.fullmatch(r'abs\((.*)\)', neg)
    if m: neg = m.group(1)
    m = re.fullmatch(r'([vas])\[(\d+):(\d+)\]', neg)
    if m: return {f"{m.group(1)}{i}" for i in range(int(m.group(2)), int(m.group(3)) + 1)}
    m = re.fullmatch(r'([vas])(\d+)', neg)
    if m: return {neg}
    if neg in ('vcc', 'exec', 'm0', 'scc'): return {neg}
    if neg in ('vcc_lo', 'vcc_hi'): return {'vcc'}
    if neg in ('exec_lo', 'exec_hi'): return {'exec'}
    return set()

def split_ops(s):
    out, depth, cur = [], 0, ''
    for ch in s:
        if ch in '[(': depth += 1
        if ch in '])': depth -= 1
        if ch == ',' and depth == 0: out.append(cur.strip()); cur = ''
        else: cur += ch
    if cur.strip(): out.append(cur.strip())
    return out

TRANS = ('v_exp_f32', 'v_log_f32', 'v_rcp_f32', 'v_rsq_f32', 'v_sqrt_f32', 'v_sin_f32', 'v_cos_f32')

class I:
    __slots__ = ('text', 'kind', 'defs', 'uses', 'tag', 'wait_for', 'mn', 'srcC', 'srcAB', 'cmt')
    def __init__(self, text, tag=None):
        self.text = text; self.tag = tag; self.wait_for = None; self.srcC = set(); self.srcAB = set(); self.cmt = ''
        t = text.strip()
        if t.endswith(':') or t.startswith('.') or t.startswith(';') or not t:
            self.kind = 'label' if t.endswith(':') else 'dir'; self.defs = set(); self.uses = set(); self.mn = ''; return
        parts = t.split(None, 1)
        mn = parts[0]; self.mn = mn
        rest = parts[1] if len(parts) > 1 else ''
        ops = split_ops(rest)
        lds = bool(re.search(r'\blds\b', rest))
        if ops:
            last = ops[-1].split()
            ops[-1] = last[0]
        R = [regs_of(o) for o in ops]
        d, u = set(), set()
        if mn.startswith('v_mfma'):
            k = 'mfma'; d = R[0]; self.srcAB = R[1] | R[2]; self.srcC = R[3]; u = R[1] | R[2] | R[3]
        elif mn.startswith('ds_read') or mn.startswith('ds_bpermute') or mn.startswith('ds_swizzle'):
            k = 'ds_r'; d = R[0]; u = set().union(*R[1:])
        elif mn.startswith('ds_write') or mn.startswith('ds_add'):
            k = 'ds_w'; u = set().union(*R)
        elif mn.startswith('buffer_load') and lds:
            k = 'dma'; u = set().union(*R) | {'m0'}
        elif mn.startswith('buffer_load') or mn.startswith('global_load'):
            k = 'vm_ld'; d = R[0]; u = set().union(*R[1:])
        elif mn.startswith('buffer_store') or mn.startswith('global_store') or mn.startswith('buffer_atomic') or mn.startswith('global_atomic'):
            k = 'vm_st'; u = set().union(*R)
        elif mn in ('buffer_wbl2', 'buffer_inv'):
            k = 'vm_st'
        elif mn.startswith('s_load') or mn.startswith('s_atomic') or mn in ('s_memtime', 's_memrealtime'):
            k = 'smem'; d = R[0]; u = set().union(*R[1:]) if len(R) > 1 else set()
        elif mn == 's_waitcnt': k = 'wait'
        elif mn == 's_barrier': k = 'barrier'
        elif mn == 's_nop': k = 'nop'
        elif mn in ('s_setprio', 's_sleep'): k = 'salu'
        elif mn.startswith('s_cbranch') or mn in ('s_branch', 's_endpgm'): k = 'branch'
        elif mn.startswith('s_cmp'):
            k = 'salu'; u = set().union(*R); d = {'scc'}
        elif mn.startswith('s_'):
            k = 'salu'; d = R[0] | {'scc'}; u = set().union(*R[1:]) if len(R) > 1 else set()
            if 'saveexec' in mn: d |= {'exec'}; u |= {'exec'}
            if mn in ('s_addc_u32', 's_subb_u32', 's_cselect_b32', 's_cselect_b64'): u |= {'scc'}
        elif mn.startswith('v_cmp'):
            k = 'valu'; d = R[0]; u = set().union(*R[1:])
        elif mn.startswith('v_permlane') and 'swap' in mn:
            k = 'perm'; d = R[0] | R[1]; u = R[0] | R[1]
        elif mn.startswith('v_readfirstlane') or mn.startswith('v_readlane'):
            k = 'rdlane'; d = R[0]; u = set().union(*R[1:])
        elif mn.startswith('v_'):
            k = 'valu'
            if mn.startswith('v_dot2'): k = 'dot'
            if any(mn.startswith(x) for x in TRANS): k = 'trans'
            d = R[0]; u = set().union(*R[1:]) if len(R) > 1 else set()
            if mn.startswith(('v_fmac', 'v_dot2c', 'v_mac')): u |= R[0]
            if mn.startswith(('v_add_co', 'v_sub_co', 'v_addc_co', 'v_subb_co')): d |= R[1]
            if mn.startswith('v_cndmask') and len(ops) == 3: u |= {'vcc'}
            if 'dpp' in mn or 'row_' in rest or 'quad_perm' in rest or 'wave_' in rest: k = 'dpp'; u |= R[0]
        else:
            raise ValueError("unknown instr: " + text)
        self.kind = k; self.defs = d; self.uses = u

def waitL(op):
    i = I('s_waitcnt lgkmcnt(0)'); i.kind = 'waitL'; i.wait_for = op; return i
def waitV(op):
    i = I('s_waitcnt vmcnt(0)'); i.kind = 'waitV'; i.wait_for = op; return i

VALUISH = ('valu', 'trans', 'dot', 'perm', 'rdlane', 'dpp')
def mfma_passes(i):
    return 4 if '16x16x32' in i.mn else 8

def resolve_waits(seq):
    out = []
    L, V = [], []
    saved = None
    for i in seq:
        if i.tag == 'snap': saved = list(V)
        if i.tag == 'restore': V = list(saved)
        if i.kind in ('ds_r', 'ds_w'): L.append(i)
        elif i.kind == 'smem': L.append(i); L.append(i)
        elif i.kind in ('vm_ld', 'vm_st', 'dma'): V.append(i)
        elif i.kind == 'wait':
            m = re.search(r'lgkmcnt\((\d+)\)', i.text)
            if m: n = int(m.group(1)); L = L[len(L) - n:] if n < len(L) and n > 0 else ([] if n == 0 else L)
            m = re.search(r'vmcnt\((\d+)\)', i.text)
            if m: n = int(m.group(1)); V = V[len(V) - n:] if n < len(V) and n > 0 else ([] if n == 0 else V)
        elif i.kind in ('waitL', 'waitV'):
            Q = L if i.kind == 'waitL' else V
            ops = i.wait_for if isinstance(i.wait_for, (list, tuple)) else [i.wait_for]
            idx = max([k for k, o in enumerate(Q) if any(o is x for x in ops)], default=-1)
            if idx < 0: continue
            n = len(Q) - 1 - idx
            if i.kind == 'waitL':
                assert not any(o.kind == 'smem' for o in Q), "smem outstanding with counted lgkm wait"
                n = min(n, 15); L = L[len(L) - n:] if n > 0 else []
                j = I(f's_waitcnt lgkmcnt({n})')
            else:
                assert len(V) <= 64, "too many vmem outstanding"
                n = min(n, 63); V = V[len(V) - n:] if n > 0 else []
                j = I(f's_waitcnt vmcnt({n})')
            j.cmt = i.cmt
            out.append(j); continue
        assert len(V) <= 63, f"vmcnt overflow at {i.text}"
        out.append(i)
    return out

def check_loads_waited(seq):
    L, V = [], []
    saved = None
    for k, i in enumerate(seq):
        if i.tag == 'snap': saved = list(V)
        if i.tag == 'restore': V = list(saved)
        if i.kind == 'label' or i.kind == 'branch':
            continue
        if i.kind == 'wait':
            m = re.search(r'lgkmcnt\((\d+)\)', i.text)
            if m: n = int(m.group(1)); L = L[len(L) - n:] if 0 < n < len(L) else ([] if n == 0 else L)
            m = re.search(r'vmcnt\((\d+)\)', i.text)
            if m: n = int(m.group(1)); V = V[len(V) - n:] if 0 < n < len(V) else ([] if n == 0 else V)
            continue
        touched = i.uses | i.defs
        for o in L + V:
            if o.defs & touched and not (o.kind == i.kind and o.tag == 'dummy'):
                raise AssertionError(f"instr #{k} '{i.text}' touches {o.defs & touched} of outstanding '{o.text}'")
        if i.kind in ('ds_r', 'ds_w'): L.append(i)
        elif i.kind == 'smem': L += [i, i]
        elif i.kind in ('vm_ld', 'vm_st', 'dma'): V.append(i)

def states(i):
    if i.text.startswith(';'): return 0
    if i.kind == 'nop': return int(i.text.split()[1]) + 1
    if i.kind in ('label', 'dir'): return 0
    return 1

def need_states(p, c):
    n = 0
    isv = lambda s: {r for r in s if r[0] in 'va' and r not in ('vcc',)}
    iss = lambda s: {r for r in s if r[0] == 's' and r != 'scc' or r == 'vcc'}
    if p.kind == 'mfma':
        ps = mfma_passes(p)
        if c.kind == 'mfma':
            if p.defs & c.srcAB: n = max(n, {4: 8, 8: 12}[ps])
            if p.defs & c.srcC and not (p.defs == c.srcC and mfma_passes(c) == ps): n = max(n, {4: 6, 8: 10}[ps])
            if p.defs & c.defs and not (p.defs & c.srcC): n = max(n, {4: 6, 8: 10}[ps])
        elif c.kind in VALUISH or c.kind in ('ds_r', 'ds_w', 'vm_ld', 'vm_st', 'dma'):
            if p.defs & (c.uses | c.defs): n = max(n, {4: 8, 8: 12}[ps])
            if c.kind in VALUISH and p.srcC & c.defs: n = max(n, {4: 3, 8: 7}[ps])
    if p.kind in VALUISH:
        if c.kind == 'mfma' and isv(p.defs) & c.uses: n = max(n, 2)
        if c.kind == 'mfma' and 'exec' in p.defs: n = max(n, 4)
        if c.kind in ('perm', 'dpp') and isv(p.defs) & c.uses: n = max(n, 2)
        if c.kind == 'rdlane' and isv(p.defs) & c.uses: n = max(n, 1)
        if iss(p.defs):
            if c.kind in ('vm_ld', 'vm_st', 'dma') and iss(p.defs) & c.uses: n = max(n, 5)
            if c.kind in VALUISH and iss(p.defs) & c.uses: n = max(n, 4 if c.kind == 'rdlane' else 2)
            if c.kind == 'salu' and iss(p.defs) & c.uses: n = max(n, 1)
        if p.kind == 'trans' and c.kind in VALUISH + ('mfma',) and p.defs & c.uses: n = max(n, 1 if c.kind != 'mfma' else 2)
        if p.kind == 'dot' and c.kind in VALUISH + ('vm_st', 'ds_w') and p.defs & (c.uses | c.defs):
            same = (c.mn == p.mn)
            ops = split_ops(c.text.split(None, 1)[1]) if same else []
            asC = same and len(ops) == 4 and not (p.defs & (regs_of(ops[1]) | regs_of(ops[2])))
            n = max(n, 0 if asC else 3)
        if 'sdwa' in p.mn and 'dst_sel:DWORD' not in p.text and c.kind in VALUISH and p.defs & (c.uses | c.defs): n = max(n, 1)
    if p.kind == 'salu' and 'm0' in p.defs and c.kind == 'dma': n = max(n, 1)
    if p.kind == 'salu' and 'exec' in p.defs and c.kind == 'dpp': n = max(n, 0)
    if p.kind in ('vm_st', 'ds_w') and ('x4' in p.mn or 'x3' in p.mn or 'b128' in p.mn or 'b96' in p.mn):
        if c.kind in VALUISH + ('mfma',) and isv(p.uses) & c.defs: n = max(n, 2)
        elif isv(p.uses) & c.defs: n = max(n, 1)
    return n

def pad_hazards(seq, verbose=False):
    out = []; npad = 0
    for c in seq:
        if c.kind in ('label', 'dir'):
            out.append(c); continue
        need = 0; dist = 0
        for p in reversed(out):
            if dist >= 20: break
            r = need_states(p, c) if p.kind not in ('label', 'dir', 'nop', 'wait', 'barrier', 'branch') else 0
            if r - dist > need: need = r - dist
            dist += states(p)
        if need > 0:
            npad += 1
            if verbose: print("pad", need, "before", c.text)
            while need > 0:
                k = min(need, 16); out.append(I(f's_nop {k-1}')); need -= k
        out.append(c)
    return out, npad

class Prog:
    def __init__(self): self.seq = []
    def __call__(self, text, tag=None):
        last = None
        for line in text.split('\n'):
            line = line.strip()
            if not line: continue
            last = I(line, tag); self.seq.append(last)
        return last
    def add(self, i): self.seq.append(i); return i
    def wl(self, op): return self.add(waitL(op))
    def wv(self, op): return self.add(waitV(op))
    def finish(self, verbose=False, check=True):
        s = resolve_waits(self.seq)
        if check: check_loads_waited(s)
        s, n = pad_hazards(s, verbose)
        return s, n

def render(seq):
    o = []
    for i in seq:
        t = i.text if i.kind in ('label', 'dir') else '  ' + i.text
        if i.cmt: t += '  ; ' + i.cmt
        o.append(t)
    return '\n'.join(o) + '\n'

def kd(name, vgpr, accum, sgpr=102):
    return (f'.section .rodata,"a"\n.p2align 6\n.amdhsa_kernel {name}\n  .amdhsa_next_free_vgpr {vgpr}\n  .amdhsa_next_free_sgpr {sgpr}\n'
            f'  .amdhsa_accum_offset {accum}\n  .amdhsa_group_segment_fixed_size 0\n  .amdhsa_kernarg_size 104\n  .amdhsa_user_sgpr_count 2\n'
            f'  .amdhsa_user_sgpr_kernarg_segment_ptr 1\n  .amdhsa_system_sgpr_workgroup_id_x 1\n  .amdhsa_float_denorm_mode_32 3\n.end_amdhsa_kernel\n')
def khead(name):
    return f'.text\n.globl {name}\n.p2align 8\n.type {name},@function\n{name}:\n'
```

```python
import sys
from common import *
from k0 import gen_k0
from k1 import gen_k1
from k2 import gen_k2
def build(path, k1kw={}, k2kw={}, dbg=False, extra_launch=''):
    ref = open(f"cdna_kernels/{NAME}.s.ref").read().split("\n")
    head = [l for l in ref if l.startswith(";") and "@launch" not in l and "Override launch" not in l and "grid=ceil" not in l][:15]
    k0 = gen_k0(dbg=dbg); k1 = gen_k1(dbg=dbg, **k1kw); k2 = gen_k2(dbg=dbg, **k2kw)
    if k1kw.get("merge", 1): k2 = ("", "", "")
    use0 = not k1kw.get("side", 1)
    if not use0: k0 = ("", "", "")
    t = "\n".join(head) + "\n" + (k0[2] + "\n" if use0 else "") + k1[2] + "\n" + (k2[2] + "\n" if k2[2] else "") + extra_launch + '.amdgcn_target "amdgcn-amd-amdhsa--gfx950"\n'
    t += k0[0] + k1[0] + k2[0] + k0[1] + k1[1] + k2[1]
    open(path, "w").write(t)
    return k1[3]
if __name__ == "__main__":
    print(build(sys.argv[1] if len(sys.argv) > 1 else f"cdna_kernels/{NAME}.s"))
```

```python
NAME = "recurrent_scan__ssm_conv_h3__glu_gated_bilinear__prompt"
S, D, F = 2048, 576, 4608
ROWB = D * 2
WROWB = F * 2
NX = S * D * 2
NW = D * F * 2
WS_KVT = 0
WS_STATS = 0x240000
WS_PART = 0x280000
PART_BYTES = 16 * 72 * 2048 * 16
KA_Q, KA_K, KA_V, KA_SHK, KA_SSMK, KA_SSMD, KA_BX, KA_WG, KA_WU, KA_WD, KA_OUT, KA_DBG, KA_WS = [8 * i for i in range(13)]

def srd(p, d, b, nbytes, add=0):
    if add == 0:
        p(f"s_mov_b32 s{d}, s{b}\ns_mov_b32 s{d+1}, s{b+1}")
    elif add > 0:
        p(f"s_add_u32 s{d}, s{b}, {add}\ns_addc_u32 s{d+1}, s{b+1}, 0")
    else:
        p(f"s_sub_u32 s{d}, s{b}, {-add}\ns_subb_u32 s{d+1}, s{b+1}, 0")
    p(f"s_mov_b32 s{d+2}, {nbytes}\ns_mov_b32 s{d+3}, 0x20000")

def stamp_begin(p):
    p("s_memrealtime s[82:83]")
def stamp_end(p, wsreg, slot, wavereg, nwaves, extra=None):
    p("s_memrealtime s[84:85]\ns_waitcnt vmcnt(0) lgkmcnt(0)\ns_memrealtime s[86:87]\ns_waitcnt lgkmcnt(0)")
    p(f"s_mov_b32 s88, s{wsreg}\ns_mov_b32 s89, s{wsreg+1}\ns_mov_b32 s90, 0x10000000\ns_mov_b32 s91, 0x20000")
    p(f"v_mov_b32 v16, s82\nv_mov_b32 v17, s84\nv_mov_b32 v18, s86\nv_mov_b32 v19, s{extra if extra else 84}")
    p(f"s_mul_i32 s92, s2, {nwaves*16}\ns_lshl_b32 s93, s{wavereg}, 4\ns_add_u32 s92, s92, s93\ns_add_u32 s92, s92, {0x4000000 + slot*0x10000}\nv_mov_b32 v20, 0")
    p("buffer_store_dwordx4 v[16:19], v20, s[88:91], s92 offen")
```

```python
from asmfw import *
from common import *

def gen_k0(dbg=False):
    p = Prog()
    p("s_cmp_ge_u32 s2, 256\ns_cbranch_scc1 K0_done")
    p(f"s_load_dwordx4 s[4:7], s[0:1], {KA_K}")
    p(f"s_load_dwordx2 s[8:9], s[0:1], {KA_SHK}")
    p(f"s_load_dwordx2 s[10:11], s[0:1], {KA_WS}")
    if dbg: stamp_begin(p)
    p("v_lshrrev_b32 v1, 6, v0\nv_and_b32 v2, 63, v0")
    p("v_readfirstlane_b32 s28, v1")
    p("s_lshr_b32 s29, s2, 2\ns_and_b32 s30, s2, 3")
    p("s_waitcnt lgkmcnt(0)")
    srd(p, 12, 4, NX); srd(p, 16, 6, NX); srd(p, 20, 8, D * 8); srd(p, 24, 10, NX, WS_KVT)
    p(f"s_mul_i32 s31, s29, {32*ROWB}\ns_mul_i32 s32, s30, 288\ns_add_u32 s31, s31, s32")
    KT, VT = 0, 11 * 1024
    dmas = []
    p("s_mov_b32 s33, 3641")
    for z in range(5):
        p(f"s_add_u32 s34, s28, {4*z}")
        p(f"s_cmp_ge_u32 s34, 11\ns_cselect_b32 s35, 11, 0\ns_cselect_b32 s40, s16, s12\ns_cselect_b32 s41, s17, s13\ns_cselect_b32 s36, 0, {4*ROWB}")
        p(f"s_mov_b32 s42, {NX}\ns_mov_b32 s43, 0x20000")
        p("s_sub_u32 s35, s34, s35\ns_lshl_b32 s35, s35, 6")
        p("v_add_u32 v3, s35, v2")
        p("v_mul_lo_u32 v4, v3, s33\nv_lshrrev_b32 v4, 16, v4")
        p("v_mul_u32_u24 v5, 18, v4\nv_sub_u32 v5, v3, v5\nv_lshlrev_b32 v5, 4, v5")
        p(f"v_mul_u32_u24 v4, {ROWB}, v4\nv_add_u32 v4, v4, v5")
        p("s_sub_u32 s36, s31, s36\nv_add_u32 v4, s36, v4")
        p("s_lshl_b32 m0, s34, 10")
        dmas.append(p("buffer_load_dwordx4 v4, s[40:43], 0 offen lds"))
    p("v_lshrrev_b32 v6, 4, v2\nv_and_b32 v7, 15, v2")
    p("v_lshrrev_b32 v8, 2, v7\nv_and_b32 v9, 3, v7")
    p("v_lshl_add_u32 v8, v6, 3, v8\nv_mul_u32_u24 v8, 288, v8\nv_lshl_add_u32 v8, v9, 3, v8")
    p("s_mul_i32 s37, s30, 144\ns_lshl_b32 s38, s28, 4\ns_add_u32 s37, s37, s38")
    p("v_add_u32 v10, s37, v7")
    p("v_lshlrev_b32 v11, 3, v10")
    wl = [p(f"buffer_load_dwordx2 v[{20+2*n}:{21+2*n}], v11, s[20:23], 0 offen offset:{512*n}") for n in range(3)]
    p("s_lshl_b32 s39, s29, 6\ns_sub_u32 s39, 4080, s39")
    p("v_lshlrev_b32 v12, 12, v10\nv_lshlrev_b32 v13, 4, v6\nv_sub_u32 v12, v12, v13\nv_add_u32 v12, s39, v12")
    p("s_lshl_b32 s44, s28, 5\nv_add_u32 v8, s44, v8")
    p("s_waitcnt vmcnt(0)\ns_barrier")
    for n in range(3):
        if n == 2: p("s_cmp_ge_u32 s28, 1\ns_cbranch_scc1 K0_fin")
        rd = []
        for b in range(3): rd.append(p(f"ds_read_b64_tr_b16 v[{30+2*b}:{31+2*b}], v8 offset:{KT + 128*n + 4*288*b}"))
        for b in range(2): rd.append(p(f"ds_read_b64_tr_b16 v[{36+2*b}:{37+2*b}], v8 offset:{VT + 128*n + 4*288*b}"))
        w = 20 + 2 * n
        p(f"v_lshlrev_b32 v40, 16, v{w}\nv_and_b32 v41, 0xffff0000, v{w}\nv_lshlrev_b32 v42, 16, v{w+1}\nv_and_b32 v43, 0xffff0000, v{w+1}")
        p.wl(rd[-1])
        for e in range(1, 12):
            src = 30 + e // 2
            p(f"v_lshlrev_b32 v{44+e}, 16, v{src}" if e % 2 == 0 else f"v_and_b32 v{44+e}, 0xffff0000, v{src}")
        for o in range(8):
            e = o + 4
            p(f"v_mul_f32 v{60+o}, v43, v{44+e-3}\nv_fmac_f32 v{60+o}, v42, v{44+e-2}\nv_fmac_f32 v{60+o}, v41, v{44+e-1}\nv_fmac_f32 v{60+o}, v40, v{44+e}")
            src = 36 + o // 2
            p(f"v_lshlrev_b32 v70, 16, v{src}" if o % 2 == 0 else f"v_and_b32 v70, 0xffff0000, v{src}")
            p(f"v_mul_f32 v{60+o}, v{60+o}, v70")
        for dd in range(4):
            p(f"v_cvt_pk_bf16_f32 v{72+dd}, v{60+7-2*dd}, v{60+6-2*dd}")
        p(f"s_mov_b32 s45, {64*4096*n}")
        p(f"buffer_store_dwordx4 v[72:75], v12, s[24:27], s45 offen")
    p("K0_fin:")
    if dbg: stamp_end(p, 10, 0, 28, 4)
    p("K0_done:\ns_endpgm")
    seq, n = p.finish()
    return khead("k0_kernel") + render(seq), kd("k0_kernel", 80, 80), "; @launch kernel=k0_kernel grid=(256,1,1) block=(256,1,1) lds=20480"
if __name__ == "__main__":
    print(gen_k0()[0])
```

```python
from asmfw import *
from common import *

def X(tt, ks): return 16 + (tt * 18 + ks) * 4
def ACC(u, mat, tt): return 160 + ((u * 2 + mat) * 2 + tt) * 4
def ACC2(st, u, tt): return 16 + st * 32 + (u * 2 + tt) * 4
NBUF = 12
def H(tt, s): return 4 * NBUF + (tt * 9 + s) * 4
TMP = 224
RA = 240
V1A, V1B, VHV, V2V = 252, 253, 254, 255
RAH = 8
VS = 7; VST = 4; DUM = 120
KROW = 32 * WROWB
MF = "v_mfma_f32_16x16x32_bf16"

def gen_k1(LA=7, WE=4, PB=64, amap=16, stflags="sc1", wflags="", dbg=False, code_pf=True, wpf=1, xflags='', rm=(), NPOS=9, earlybars=(), GU=4, XFL=4, NPRO=12, spf=0, spw='dword', PFAT=8, side=1, XFL2=6, kvflags=''):
    p = Prog()
    C = NPOS * 4
    wins = [0, 3, 6]
    XB = (NPOS - 9) * 16384
    p("s_cmp_ge_u32 s2, 256\ns_cbranch_scc1 K1_done")
    p(f"s_load_dwordx2 s[4:5], s[0:1], {KA_Q}")
    p(f"s_load_dwordx4 s[8:11], s[0:1], {KA_WG}")
    p(f"s_load_dwordx2 s[12:13], s[0:1], {KA_WD}")
    p(f"s_load_dwordx2 s[6:7], s[0:1], {KA_WS}")
    if side:
        p(f"s_load_dwordx4 s[84:87], s[0:1], {KA_K}\ns_load_dwordx2 s[88:89], s[0:1], {KA_SHK}")
    if dbg: stamp_begin(p)
    if code_pf:
        p("s_getpc_b64 s[64:65]\ns_lshr_b32 s16, s2, 3\ns_and_b32 s20, s16, 1\ns_mul_i32 s20, s20, 192")
        p("v_add_u32 v5, s20, v0\nv_cmp_gt_u32 vcc, 64, v0\nv_cndmask_b32 v5, v5, v0, vcc\nv_min_u32 v5, K1_NLINES, v5\nv_lshlrev_b32 v5, 7, v5")
        p(f"global_load_dword a{DUM}, v5, s[64:65]", tag='dummy')
    p("v_lshrrev_b32 v1, 6, v0\nv_and_b32 v2, 63, v0")
    p("v_readfirstlane_b32 s14, v1")
    p("s_and_b32 s15, s2, 7\ns_lshr_b32 s16, s2, 3")
    if amap == 16:
        p("s_lshr_b32 s17, s16, 1\ns_and_b32 s18, s16, 1\ns_lshl_b32 s19, s15, 1\ns_add_u32 s18, s18, s19")
    elif amap == 8:
        p("s_and_b32 s17, s15, 1\ns_lshl_b32 s17, s17, 3\ns_lshr_b32 s19, s16, 2\ns_add_u32 s17, s17, s19")
        p("s_lshr_b32 s18, s15, 1\ns_lshl_b32 s18, s18, 2\ns_and_b32 s19, s16, 3\ns_add_u32 s18, s18, s19")
    p("s_lshl_b32 s19, s17, 7\ns_lshl_b32 s20, s14, 5\ns_add_u32 s19, s19, s20")
    p("v_and_b32 v3, 15, v2\nv_lshrrev_b32 v1, 4, v2")
    p(f"v_lshrrev_b32 v4, 3, v2\nv_mul_u32_u24 v4, {ROWB}, v4\nv_and_b32 v5, 7, v2\nv_xor_b32 v5, v5, v1\nv_lshl_add_u32 v4, v5, 4, v4\nv_xor_b32 v5, 64, v4")
    XV = 188
    p(f"v_mov_b32 v{XV}, v4\nv_add_u32 v{XV+1}, {8*ROWB-1024}, v5\nv_add_u32 v{XV+2}, {16*ROWB-2048}, v4\nv_add_u32 v{XV+3}, {24*ROWB-3072}, v5")
    p(f"s_mul_i32 s21, s19, {ROWB}\ns_lshl_b32 s22, s14, 15")
    if XB: p(f"s_add_u32 s22, s22, {XB}")
    p("s_waitcnt lgkmcnt(0)")
    if dbg: p("s_memrealtime s[76:77]")

    SB = XB + 131072; KT, VT = SB, SB + 11 * 1024
    sv = 192
    sdm = []
    def side_loads():
        p("s_lshr_b32 s90, s2, 2\ns_and_b32 s91, s2, 3")
        p(f"s_mul_i32 s92, s90, {32*ROWB}\ns_mul_i32 s93, s91, 288\ns_add_u32 s92, s92, s93\ns_mov_b32 s93, 3641")
        p(f"s_mov_b32 s74, {NX}\ns_mov_b32 s75, 0x20000")
        for z in range(5):
            p(f"s_add_u32 s70, s14, {4*z}")
            p(f"s_cmp_ge_u32 s70, 11\ns_cselect_b32 s71, 11, 0\ns_cselect_b32 s72, s86, s84\ns_cselect_b32 s73, s87, s85\ns_cselect_b32 s59, 0, {4*ROWB}")
            p("s_sub_u32 s71, s70, s71\ns_lshl_b32 s71, s71, 6\ns_sub_u32 s59, s92, s59")
            p(f"v_add_u32 v{sv}, s71, v2\nv_mul_lo_u32 v{sv+1}, v{sv}, s93\nv_lshrrev_b32 v{sv+1}, 16, v{sv+1}")
            p(f"v_mul_u32_u24 v{sv+2}, {ROWB-288}, v{sv+1}\nv_lshl_add_u32 v{sv+2}, v{sv}, 4, v{sv+2}\nv_add_u32 v{sv+2}, s59, v{sv+2}")
            p(f"s_lshl_b32 s70, s70, 10\ns_add_u32 m0, s70, {SB}")
            sdm.append(p(f"buffer_load_dwordx4 v{sv+2}, s[72:75], 0 offen {kvflags} lds"))
        p(f"s_mov_b32 s72, s88\ns_mov_b32 s73, s89\ns_mov_b32 s74, {D*8}")
        p(f"s_mul_i32 s70, s91, 144\ns_lshl_b32 s71, s14, 4\ns_add_u32 s70, s70, s71\nv_add_u32 v{sv+3}, s70, v3\nv_lshlrev_b32 v{sv+4}, 3, v{sv+3}")
        for n in range(3): sdm.append(p(f"buffer_load_dwordx2 v[{sv+6+2*n}:{sv+7+2*n}], v{sv+4}, s[72:75], 0 offen offset:{512*n}"))
    def side_compute():
        a, st_ = sv + 4, TMP + 12
        p(f"v_lshrrev_b32 v{a}, 2, v3\nv_lshl_add_u32 v{a}, v1, 3, v{a}\nv_mul_u32_u24 v{a}, 288, v{a}\nv_and_b32 v{st_}, 3, v3\nv_lshl_add_u32 v{a}, v{st_}, 3, v{a}")
        p(f"s_lshl_b32 s70, s14, 5\ns_add_u32 s70, s70, {SB}\nv_add_u32 v{a}, s70, v{a}")
        p(f"s_lshl_b32 s70, s90, 6\ns_sub_u32 s70, 4080, s70\nv_lshlrev_b32 v{st_}, 12, v{sv+3}\nv_lshlrev_b32 v{sv}, 4, v1\nv_sub_u32 v{st_}, v{st_}, v{sv}\nv_add_u32 v{st_}, s70, v{st_}")
        p(f"s_add_u32 s72, s6, {WS_KVT}\ns_addc_u32 s73, s7, 0\ns_mov_b32 s74, {NX}")
        p(f"s_mov_b32 s70, {64*4096}\ns_cmp_eq_u32 s14, 0\ns_cselect_b32 s71, {128*4096}, 0x40000000")
        p.wv(sdm[-1]); p("s_barrier")
        R0 = 24
        for n in range(3):
            if n == 2: p("s_cmp_ge_u32 s14, 1\ns_cbranch_scc1 K1_sidedone")
            b = [24, 96, 24][n]
            rd_ = [p(f"ds_read_b64_tr_b16 v[{b+2*k}:{b+2*k+1}], v{a} offset:{128*n + 4*288*k}") for k in range(3)]
            rd_ += [p(f"ds_read_b64_tr_b16 v[{b+6+2*k}:{b+7+2*k}], v{a} offset:{11*1024 + 128*n + 4*288*k}") for k in range(2)]
            w = sv + 6 + 2 * n; W = b + 10; KF = b + 14; O = b + 26
            p(f"v_lshlrev_b32 v{W}, 16, v{w}\nv_and_b32 v{W+1}, 0xffff0000, v{w}\nv_lshlrev_b32 v{W+2}, 16, v{w+1}\nv_and_b32 v{W+3}, 0xffff0000, v{w+1}")
            p.wl(rd_[2])
            for e in range(1, 12):
                p(f"v_lshlrev_b32 v{KF+e}, 16, v{b+e//2}" if e % 2 == 0 else f"v_and_b32 v{KF+e}, 0xffff0000, v{b+e//2}")
            p.wl(rd_[4])
            for o in range(8):
                e = o + 4
                p(f"v_mul_f32 v{O+o}, v{W+3}, v{KF+e-3}\nv_fmac_f32 v{O+o}, v{W+2}, v{KF+e-2}\nv_fmac_f32 v{O+o}, v{W+1}, v{KF+e-1}\nv_fmac_f32 v{O+o}, v{W}, v{KF+e}")
                p(f"v_lshlrev_b32 v{KF}, 16, v{b+6+o//2}" if o % 2 == 0 else f"v_and_b32 v{KF}, 0xffff0000, v{b+6+o//2}")
                p(f"v_mul_f32 v{O+o}, v{O+o}, v{KF}")
            for dd in range(4): p(f"v_cvt_pk_bf16_f32 v{TMP+4*n+dd}, v{O+7-2*dd}, v{O+6-2*dd}")
        p("K1_sidedone:"); p("s_nop 1")
    if spf:
        rows_ = D // amap // 2
        p("s_cmp_ge_u32 s14, 2\ns_cselect_b32 s68, s10, s8\ns_cselect_b32 s69, s11, s9")
        p(f"s_and_b32 s20, s17, {amap-1}\ns_lshl_b32 s20, s20, 1\ns_and_b32 s23, s14, 1\ns_add_u32 s20, s20, s23\ns_mul_i32 s20, s20, {rows_*WROWB}")
        p("s_and_b32 s23, s18, 1\ns_lshl_b32 s23, s23, 6\ns_add_u32 s20, s20, s23\ns_mul_i32 s23, s18, 576\ns_add_u32 s20, s20, s23")
        p("s_add_u32 s68, s68, s20\ns_addc_u32 s69, s69, 0")
        for pp in range(spf):
            for r in range(rows_):
                for o in ((0,) if spw == 'dword' else (0, 64)):
                    p(f"s_load_dword s70, s[68:69], {r*WROWB + 128*pp + o}", tag='dummy')
    srd(p, 24, 4, NX)
    xd = {}; xr = {}
    def xdma(cb):
        if cb == 8: p.wl(xr[(1, 1)])
        p(f"s_add_u32 m0, s22, {(cb % 8)*4096}")
        if cb: p("s_add_u32 s21, s21, 128")
        for rg in range(4):
            xd[(cb, rg)] = p(f"buffer_load_dwordx4 v{XV + rg}, s[24:27], s21 offen offset:{1024*rg} {xflags} lds")
    for cb in range(XFL): xdma(cb)
    if side: side_loads()
    for cb in range(XFL, XFL2): xdma(cb)
    if dbg: p("s_memrealtime s[78:79]")
    p("s_cmp_ge_u32 s14, 2\ns_cselect_b32 s20, s10, s8\ns_cselect_b32 s23, s11, s9")
    p(f"s_sub_u32 s40, s20, 3072\ns_subb_u32 s41, s23, 0\ns_mov_b32 s42, {NW+3072}\ns_mov_b32 s43, 0x20000")
    p("s_and_b32 s20, s18, 1\ns_mul_i32 s53, s18, 576\ns_lshl_b32 s23, s20, 6\ns_add_u32 s54, s53, s23")
    p("s_cmp_eq_u32 s20, 1\ns_cselect_b32 s23, 0, 512\ns_add_u32 s55, s53, s23")
    share = amap; rows = D // share // 2
    VPF, VPD = 12, 13
    p(f"s_and_b32 s20, s17, {share-1}\ns_lshl_b32 s20, s20, 1\ns_and_b32 s23, s14, 1\ns_add_u32 s20, s20, s23\ns_mul_i32 s20, s20, {rows}")
    p(f"v_min_u32 v{VPF}, {rows-1}, v2\nv_add_u32 v{VPF}, s20, v{VPF}\nv_mul_u32_u24 v{VPF}, {WROWB}, v{VPF}")
    def pf_gu(pp):
        return [I(f"s_add_u32 s66, s{54 if pp < 4 else 55}, {128*pp if pp < 4 else 0}"),
                I(f"buffer_load_dword a{DUM}, v{VPF}, s[40:43], s66 offen offset:3072 {wflags}", tag='dummy')]
    nld = 2592 // share // 4
    nld = -(-2592 // (share * 4))
    def pf_d(): return [I(f"buffer_load_dword a{DUM}, v{VPD}, s[36:39], s67 offen offset:3072 {wflags}", tag='dummy')]


    srd(p, 28, 8, NW); srd(p, 32, 10, NW + 1024, -1024); srd(p, 36, 12, NW + 3072, -3072)
    p("s_lshl_b32 s52, s14, 12")
    p("v_lshrrev_b32 v5, 3, v2\ns_lshl_b32 s20, s14, 3\nv_add_u32 v5, s20, v5")
    p(f"v_and_b32 v6, 7, v2\nv_lshlrev_b32 v7, 1, v1\nv_xor_b32 v7, v7, v6\nv_lshlrev_b32 v7, 4, v7")
    p(f"v_mul_u32_u24 v{V1A}, {WROWB}, v5\nv_add_u32 v{V1A}, v{V1A}, v7\nv_add_u32 v{V1B}, {KROW-2048}, v{V1A}")
    p(f"v_mul_u32_u24 v{V2V}, {ROWB}, v5\nv_add_u32 v{V2V}, v{V2V}, v7")

    NCH = 243
    def dma_instrs(n):
        c = n & 3; pos = (n >> 2) % NPOS
        pre = []
        if c == 0: pre.append(I(f"s_add_u32 m0, s52, {pos*16384}"))
        off = f"offset:{1024*c} " if c else ""
        if n < 144:
            pp, ks = n // 36, (n % 36) // 2
            if c == 0: pre.append(I(f"s_add_u32 s62, s54, {128*pp + ks*KROW}"))
            d = I(f"buffer_load_dwordx4 v{V1A if c < 2 else V1B}, s[{28 if c % 2 == 0 else 32}:{31 if c % 2 == 0 else 35}], s62 offen {off}{wflags} lds")
        elif n < 162:
            ks = n - 144
            pre.append(I(f"s_add_u32 s62, s55, {ks*KROW + 3072 - 1024*c}"))
            d = I(f"buffer_load_dwordx4 v{VHV}, s[40:43], s62 offen {off}{wflags} lds")
        else:
            b, s = divmod(n - 162, 9)
            if s < 8: pre.append(I(f"s_add_u32 s62, s56, {32*s*ROWB + 128*b + 3072 - 1024*c}"))
            else: pre.append(I(f"s_add_u32 s62, s57, {128*b + 3072 - 1024*c}"))
            d = I(f"buffer_load_dwordx4 v{V2V}, s[36:39], s62 offen {off}{wflags} lds")
        return pre, d
    dma = {}
    n0 = 4 * (NPOS - 9)
    srd(p, 44, 6, PART_BYTES, WS_PART); srd(p, 48, 6, S * 8, WS_STATS)
    p(f"s_mul_i32 s56, s54, {ROWB//2}\ns_mul_i32 s57, s55, {ROWB//2}")
    p(f"s_mul_i32 s58, s18, {72*32768}\ns_lshl_b32 s23, s19, 4\ns_add_u32 s58, s58, s23")
    p(f"s_and_b32 s20, s17, {share-1}\ns_lshl_b32 s20, s20, 2\ns_add_u32 s20, s20, s14\ns_mul_i32 s20, s20, {nld}")
    p(f"v_min_u32 v{VPD}, {nld-1}, v2\nv_add_u32 v{VPD}, s20, v{VPD}\nv_min_u32 v{VPD}, 2591, v{VPD}\nv_lshlrev_b32 v{VPD}, 7, v{VPD}\ns_mul_i32 s67, s18, {288*ROWB}")
    assert nld <= 128
    p("v_lshrrev_b32 v5, 2, v2\ns_and_b32 s20, s14, 1\ns_lshl_b32 s20, s20, 4\nv_add_u32 v5, s20, v5")
    p(f"v_and_b32 v6, 3, v2\nv_and_b32 v7, 1, v1\nv_lshlrev_b32 v7, 1, v7\nv_xor_b32 v7, v7, v6\nv_mul_u32_u24 v{VHV}, {WROWB}, v5\nv_lshl_add_u32 v{VHV}, v7, 4, v{VHV}")
    p("v_lshrrev_b32 v5, 2, v3\nv_and_b32 v6, 3, v3")
    p("v_lshrrev_b32 v7, 1, v5\nv_lshl_add_u32 v7, v1, 1, v7\nv_and_b32 v7, 3, v7\nv_and_b32 v8, 1, v1")
    p("v_lshl_add_u32 v9, v8, 2, v5\nv_lshlrev_b32 v9, 7, v9\nv_lshrrev_b32 v10, 1, v1\nv_lshl_add_u32 v9, v10, 12, v9\nv_lshl_add_u32 v9, v6, 3, v9")
    for u in range(4):
        p(f"v_xor_b32 v10, {u}, v7\nv_lshl_add_u32 v{RA+u}, v10, 5, v9")
        p(f"v_add_u32 v{RA+4+u}, {wins[1]*16384}, v{RA+u}\nv_add_u32 v{RA+8+u}, {wins[2]*16384}, v{RA+u}")
    hw = sorted({[k for k in range(3) if wins[k] <= (n >> 2) % NPOS][-1] for n in range(144, 162)})
    assert len(hw) <= 2
    p(f"v_lshl_add_u32 v9, v1, 2, v5\nv_lshlrev_b32 v9, 6, v9\nv_lshl_add_u32 v9, v6, 3, v9")
    p(f"v_xor_b32 v10, 1, v8\nv_lshl_add_u32 v{TMP}, v8, 5, v9\nv_lshl_add_u32 v{TMP+1}, v10, 5, v9")
    for k, w in enumerate(hw):
        p(f"v_add_u32 v{RAH+2*k}, {wins[w]*16384}, v{TMP}\nv_add_u32 v{RAH+2*k+1}, {wins[w]*16384}, v{TMP+1}")
    p(f"v_lshrrev_b32 v5, 1, v1\nv_lshlrev_b32 v{VS}, 15, v5\nv_and_b32 v5, 1, v1\nv_lshl_add_u32 v5, v5, 4, v3\nv_lshl_add_u32 v{VS}, v5, 4, v{VS}")
    p(f"v_lshlrev_b32 v{VST}, 3, v3")
    XA = 14
    p(f"v_lshrrev_b32 v5, 3, v3\nv_lshlrev_b32 v5, 10, v5\nv_and_b32 v6, 7, v3\nv_lshl_add_u32 v5, v6, 7, v5\nv_add_u32 v5, s22, v5")
    p(f"v_lshrrev_b32 v6, 1, v3\nv_xor_b32 v6, v6, v1\nv_lshl_add_u32 v{XA}, v6, 4, v5\nv_xor_b32 v{XA+1}, 64, v{XA}")
    ONE, SEL, M, NM4, DT = 160, [164, 168], [172, 176], [180, 184], 192
    for k in range(4): p(f"v_mov_b32 v{ONE+k}, 0x3f803f80")
    p("v_lshlrev_b32 v5, 3, v1\nv_sub_u32 v5, v3, v5\nv_and_b32 v6, 1, v3\nv_lshlrev_b32 v6, 4, v6\ns_movk_i32 s20, 0x3f80\nv_lshlrev_b32 v6, v6, s20\nv_ashrrev_i32 v5, 1, v5")
    for h in range(2):
        for dd in range(4):
            p(f"v_cmp_eq_i32 vcc, {dd - 8*h}, v5\nv_cndmask_b32 v{SEL[h]+dd}, 0, v6, vcc")
    if dbg: p('s_memrealtime s[80:81]\ns_waitcnt lgkmcnt(0)')
    p('s_waitcnt lgkmcnt(0)')
    def meanm(ks):
        for tt in range(2):
            p.wl(xr[(tt, ks)])
            c = "0" if ks == 0 else f"v[{M[tt]}:{M[tt]+3}]"
            p(f"{MF} v[{M[tt]}:{M[tt]+3}], v[{ONE}:{ONE+3}], v[{X(tt,ks)}:{X(tt,ks)+3}], {c}")
    for cb in range(XFL2, 8): xdma(cb)
    XFL = 8
    for cb in range(9):
        p.wv(xd[(cb, 3)])
        for ks in (2 * cb, 2 * cb + 1):
            for tt in range(2):
                xr[(tt, ks)] = p(f"ds_read_b128 v[{X(tt,ks)}:{X(tt,ks)+3}], v{XA+(ks&1)} offset:{(cb % 8)*4096 + tt*2048}")
        if cb + XFL < 9: xdma(cb + XFL)
        if wpf and (cb + XFL == PFAT or (cb == 0 and XFL > PFAT)):
            for i in pf_gu(0) + pf_gu(1): p.add(i)
        if cb + XFL == 9 or (cb == 0 and XFL == 9):
            for n in range(n0):
                pre, d = dma_instrs(n)
                for i in pre: p.add(i)
                dma[n] = p.add(d)
        if side and cb == 0: side_compute()
        if 0 < cb: meanm(2 * cb - 2); meanm(2 * cb - 1)
    p("s_waitcnt lgkmcnt(0)")
    if dbg: p("s_memrealtime s[96:97]\ns_waitcnt lgkmcnt(0)")
    p("s_barrier")
    meanm(16); meanm(17)
    npro = NPRO
    pend = []
    for n in range(n0, npro):
        pre, d = dma_instrs(n); dma[n] = d
        pend.append(pre + [d])
    for k in range(4):
        for i in pend.pop(0): p.add(i)
    MT = [5, 6]
    for tt in range(2):
        p(f"v_mul_f32 v{MT[tt]}, 0x3ae38e39, v{M[tt]}")
        p(f"v_cvt_pk_bf16_f32 v{NM4[tt]}, v{MT[tt]}, v{MT[tt]}\nv_lshlrev_b32 v{NM4[tt]}, 16, v{NM4[tt]}\nv_xor_b32 v{NM4[tt]}, 0x80000000, v{NM4[tt]}")
        for k in range(1, 4): p(f"v_mov_b32 v{NM4[tt]+k}, v{NM4[tt]}")
    fr = [(tt, ks) for ks in range(18) for tt in range(2)]
    cq = []
    for k, (tt, ks) in enumerate(fr):
        t = DT + 8 * (k % 4); x = X(tt, ks)
        for h in range(2):
            p(f"{MF} v[{t+4*h}:{t+4*h+3}], v[{SEL[h]}:{SEL[h]+3}], v[{x}:{x+3}], v[{NM4[tt]}:{NM4[tt]+3}]")
            if k >= 2:
                for i in cq.pop(0): p.add(i)
        cq += [[I(f"v_cvt_pk_bf16_f32 v{x+2*h}, v{t+4*h}, v{t+4*h+1}"), I(f"v_cvt_pk_bf16_f32 v{x+2*h+1}, v{t+4*h+2}, v{t+4*h+3}")] for h in range(2)]
        if pend and k % 3 == 2:
            for i in pend.pop(0): p.add(i)
    for c in cq:
        for i in c: p.add(i)
    assert not pend
    if dbg: p('s_memrealtime s[60:61]\ns_waitcnt lgkmcnt(0)')
    p("s_nop 0", tag='snap')
    p("s_cmp_ge_u32 s18, 2\ns_cbranch_scc1 K1_nostat\ns_cmp_eq_u32 s18, 1\ns_cbranch_scc1 K1_stat1")
    for tt in range(2):
        if tt: p("K1_stat1:")
        for ks in range(18):
            c = "0" if ks == 0 else f"v[{DT}:{DT+3}]"
            p(f"{MF} v[{DT}:{DT+3}], v[{X(tt,ks)}:{X(tt,ks)+3}], v[{X(tt,ks)}:{X(tt,ks)+3}], {c}")
        q, T = DT + 4, DT + 6
        p(f"v_and_b32 v{T}, 3, v3\nv_cmp_eq_u32 vcc, 1, v{T}\nv_cndmask_b32 v{q}, v{DT}, v{DT+1}, vcc\nv_cmp_eq_u32 vcc, 2, v{T}\nv_cndmask_b32 v{q}, v{q}, v{DT+2}, vcc\nv_cmp_eq_u32 vcc, 3, v{T}\nv_cndmask_b32 v{q}, v{q}, v{DT+3}, vcc")
        p(f"v_add_f32 v{T}, v{MT[tt]}, v{NM4[tt]}\nv_mul_f32 v{T}, v{T}, v{T}\nv_mul_f32 v{q}, 0x3ae38e39, v{q}\nv_sub_f32 v{q}, v{q}, v{T}\nv_max_f32 v{q}, 0, v{q}")
        p(f"v_cvt_pk_bf16_f32 v{q}, v{q}, v{q}\nv_lshlrev_b32 v{q}, 16, v{q}\nv_add_f32 v{q}, 0x3727c5ac, v{q}")
        p(f"v_cvt_pk_bf16_f32 v{q}, v{q}, v{q}\nv_lshlrev_b32 v{q}, 16, v{q}\nv_sqrt_f32 v{q}, v{q}")
        p(f"v_cvt_pk_bf16_f32 v{q}, v{q}, v{q}\nv_lshlrev_b32 v{q}, 16, v{q}\nv_rcp_f32 v{T+1}, v{q}\nv_xor_b32 v{T}, 0x80000000, v{NM4[tt]}")
        p(f"v_lshrrev_b32 v{q}, 2, v3\nv_cmp_eq_u32 vcc, v{q}, v1\nv_cndmask_b32 v{q}, 0x40000000, v{VST}, vcc\ns_lshl_b32 s59, s19, 3")
        p(f"buffer_store_dwordx2 v[{T}:{T+1}], v{q}, s[48:51], s59 offen offset:{128*tt}")
        if tt == 0: p("s_branch K1_nostat")
    p("K1_nostat:")
    p("s_nop 7", tag='restore')

    frags = []
    def lds(n):
        c = n & 3; pos = (n >> 2) % NPOS
        w = [k for k in range(3) if wins[k] <= pos][-1]
        return w, (pos - wins[w]) * 16384 + c * 1024
    def order(nu, first):
        o = []
        if first: o += [(ks, u) for ks in range(GU) for u in range(nu)]
        else: o += [(ks, u) for u in range(nu) for ks in range(GU)]
        o += [(ks, u) for ks in range(GU, 18 - GU) for u in range(nu)]
        o += [(ks, u) for u in range(nu) for ks in range(18 - GU, 18)]
        return o
    for pp in range(4):
        for ks, u in order(4, pp == 0):
            for mat in range(2):
                n = pp * 36 + ks * 2 + mat; win, off = lds(n)
                frags.append(dict(n=n, ra=RA + win * 4 + u, o1=off, o2=off + 8192,
                                  mf=[(ACC(u, mat, tt), f"v[{X(tt,ks)}:{X(tt,ks)+3}]", ks == 0) for tt in range(2)], key=('p', pp, ks, u, mat)))
    for ks, u in order(2, False):
        for mat in range(2):
            n = 144 + ks; win, off = lds(n)
            frags.append(dict(n=n, ra=RAH + hw.index(win) * 2 + u, o1=off + mat * 8192, o2=off + mat * 8192 + 4096,
                              mf=[(ACC(u, mat, tt), f"v[{X(tt,ks)}:{X(tt,ks)+3}]", ks == 0) for tt in range(2)], key=('p', 4, ks, u, mat)))
    for b in range(9):
        for s in range(9):
            for u in range(4):
                n = 162 + b * 9 + s; win, off = lds(n)
                frags.append(dict(n=n, ra=RA + win * 4 + u, o1=off, o2=off + 8192,
                                  mf=[(ACC2(b & 1, u, tt), f"a[{H(tt,s)}:{H(tt,s)+3}]", s == 0) for tt in range(2)], key=('q', b, s, u)))
    NF = len(frags); NM = 2 * NF
    fidx = {f['key']: k for k, f in enumerate(frags)}
    first_read = {}; last_use = {}
    for k, f in enumerate(frags):
        first_read.setdefault(f['n'], 2 * (k - LA) - 1); last_use[f['n']] = 2 * k + 1
    b0 = PB - 2 * LA - 2
    while b0 % 8 != 5: b0 -= 1
    bars = sorted(set(list(earlybars) + list(range(b0, NM - 2 * LA, PB))))
    reads = [[] for _ in range(NM)]; post = [[] for _ in range(NM)]
    rd = {}
    def mkread(k, h):
        f = frags[k]; b = 4 * (k % NBUF) + 2 * h
        return I(f"ds_read_b64_tr_b16 a[{b}:{b+1}], v{f['ra']} offset:{f['o1'] if h == 0 else f['o2']}")
    need0 = [n for n in range(NCH) if first_read[n] <= bars[0]]
    p.wv([dma[n] for n in need0]); p("s_barrier")
    if dbg: p("s_memrealtime s[94:95]\ns_memtime s[98:99]\ns_waitcnt lgkmcnt(0)")
    for k in range(LA):
        for h in range(2): rd[(k, h)] = p.add(mkread(k, h))
    for k in range(LA, NF):
        for h in range(2):
            rd[(k, h)] = mkread(k, h); reads[2 * (k - LA) + h].append(rd[(k, h)])
    p.wl(rd[(WE - 1, 1)])
    for k in range(WE, NF, WE):
        post[2 * k - 1].append(waitL(rd[(min(k + WE - 1, NF - 1), 1)]))
    streams = []
    lastg = -2
    dsched = {}
    for n in range(npro, NCH):
        e = (min(b for b in bars if b >= last_use[n - C]) + 1) if n >= C else 0
        behind = 8 * (n - C + PB // 8) < lastg
        g = max(e + 2, lastg + (4 if behind else 8))
        while g % 4 != 2: g += 1
        pg = lastg; lastg = g
        pre, d = dma_instrs(n); dma[n] = d; dsched[n] = g
        streams.append([[i, max(e, pg + 1), g - 2] for i in pre] + [[d, g, g]])
    for bi, b in enumerate(bars):
        nxt = bars[bi + 1] if bi + 1 < len(bars) else NM + 100
        need = [n for n in range(NCH) if b < first_read[n] <= nxt]
        for n in need: assert n < npro or dsched[n] < b, (n, b)
        if need: post[b].append(waitV([dma[n] for n in need]))
        post[b].append(I("s_barrier"))
    if side:
        streams.append([[I(f"buffer_store_dwordx4 v[{TMP+4*n}:{TMP+4*n+3}], v{TMP+12}, s[72:75], {['0', 's70', 's71'][n]} offen {stflags}"), 30 + 16 * n, 44 + 16 * n] for n in range(3)])
    if wpf:
        if spf == 1: streams.append([[i, 4, 12] for i in pf_gu(1)])
        for pp in range(2, 5): streams.append([[i, 288 * (pp - 2) + 20, 288 * (pp - 2) + 40] for i in pf_gu(pp)])
        st = [[pf_d()[0], 700, 720]]
        if nld > 64: st += [[I(f"v_add_u32 v{VPD}, 8192, v{VPD}"), 730, 760], [pf_d()[0], 770, 790]]
        streams.append(st)
    for pp in range(5):
        nu = 4 if pp < 4 else 2
        st = []
        for u in range(nu):
            e = 2 * fidx[('p', pp, 17, u, 1)] + 1 + 3
            if pp < 4 and (pp < 3 or u < 2): dl = 2 * fidx[('p', pp + 1, 0, u, 0)] - 2
            elif pp == 3: dl = e + 60
            else: dl = 2 * fidx[('q', 0, 8, 0)] - 12
            unit = pp * 4 + u; s = unit // 2; hh = unit % 2
            for tt in range(2):
                for r in range(4): st.append([I(f"v_mul_f32 v{HT(u,tt)+r}, v{ACC(u,0,tt)+r}, v{ACC(u,1,tt)+r}"), e, dl])
            dl2 = dl + 30 if pp < 4 else dl + 6
            for tt in range(2):
                t = HT(u, tt)
                st += [[I(f"v_cvt_pk_bf16_f32 v{t}, v{t}, v{t+1}"), e, dl2], [I(f"v_cvt_pk_bf16_f32 v{t+2}, v{t+2}, v{t+3}"), e, dl2]]
            for tt in range(2):
                t = HT(u, tt)
                st += [[I(f"v_accvgpr_write_b32 a{H(tt,s)+2*hh}, v{t}"), e, dl2], [I(f"v_accvgpr_write_b32 a{H(tt,s)+2*hh+1}, v{t+2}"), e, dl2]]
        streams.append(st)
    PK = 96
    for b in range(9):
        st = []
        for u in range(4):
            kl = fidx[('q', b, 8, u)]
            e = 2 * kl + 1 + 3 + (16 * u if b < 8 else 0)
            dl = e + 24
            k = PK + 4 * ((4 * b + u) % 8)
            a0, a1 = ACC2(b & 1, u, 0), ACC2(b & 1, u, 1)
            for t in [f"v_cvt_pk_bf16_f32 v{k}, v{a0}, v{a0+1}", f"v_cvt_pk_bf16_f32 v{k+1}, v{a0+2}, v{a0+3}",
                      f"v_cvt_pk_bf16_f32 v{k+2}, v{a1}, v{a1+1}", f"v_cvt_pk_bf16_f32 v{k+3}, v{a1+2}, v{a1+3}",
                      f"s_add_u32 s{68+(4*b+u)%8}, s58, {(8*b+2*u)*32768}",
                      f"v_permlane16_swap_b32 v{k}, v{k+2}", f"v_permlane16_swap_b32 v{k+1}, v{k+3}",
                      f"buffer_store_dwordx4 v[{k}:{k+3}], v{VS}, s[44:47], s{68+(4*b+u)%8} offen {stflags}"]:
                st.append([I(t), e, dl])
        streams.append(st)
    for st in streams:
        for k in range(len(st) - 2, -1, -1): st[k][2] = min(st[k][2], st[k + 1][2])
    if 'valu' in rm: streams = [[it for it in st if it[0].kind not in ('valu', 'dot', 'perm', 'trans', 'nop')] for st in streams]
    if 'dma' in rm: streams = [[it for it in st if it[0].kind != 'dma'] for st in streams]
    if 'salu' in rm: streams = [[it for it in st if it[0].kind != 'salu'] for st in streams]
    if 'st' in rm: streams = [[it for it in st if it[0].kind != 'vm_st'] for st in streams]
    if 'bar' in rm: post = [[i for i in m if i.kind != 'barrier'] for m in post]
    big = lambda i: i.kind in ('dma', 'perm', 'vm_st', 'vm_ld')
    cost = lambda i: 2 if big(i) else 1
    gaps = [[] for _ in range(NM)]
    over = 0
    reserved = set(dsched.values())
    for g in range(NM):
        used = len(reads[g]) + len(post[g])
        if g + 1 in reserved and g + 1 < NM: used = max(used, 2)
        while True:
            cand = [s for s in streams if s and s[0][1] <= g]
            if not cand: break
            forced = [s for s in cand if s[0][2] <= g]
            if forced: s = min(forced, key=lambda x: x[0][2])
            else:
                s = min(cand, key=lambda s: min(it[2] - 1.5 * k for k, it in enumerate(s[:40])))
                it = s[0][0]
                if big(it):
                    ok = (not gaps[g] and not post[g] and len(reads[g]) == 1 and g > 0 and len(reads[g-1]) + len(post[g-1]) + len(gaps[g-1]) == 1
                          and not any(big(x) for x in gaps[g-1]) and g not in reserved and g + 1 not in reserved)
                    if not ok:
                        alt = [x for x in cand if not big(x[0][0])]
                        if not alt or used >= 2: break
                        s = min(alt, key=lambda s: min(it[2] - 1.5 * k for k, it in enumerate(s[:40])))
                elif used >= 2:
                    if not any(it[2] - g < (k + 1) * 1.0 - 1 for k, it in enumerate(s[:40])) or used >= 3: break
            it = s.pop(0)[0]
            if big(it) and len(reads[g]) == 1 and g > 0 and len(reads[g-1]) + len(post[g-1]) + len(gaps[g-1]) == 1 and not gaps[g]:
                reads[g-1] += reads[g]; reads[g] = []; used -= 1
            gaps[g].append(it); used += cost(it)
        if used > 2: over += used - 2
    for g in range(NM):
        f = frags[g // 2]; acc, bop, z = f['mf'][g % 2]
        b = 4 * ((g // 2) % NBUF)
        p(f"{MF} v[{acc}:{acc+3}], a[{b}:{b+3}], {bop}, {'0' if z else f'v[{acc}:{acc+3}]'}")
        for i in reads[g] + gaps[g] + post[g]: p.add(i)
    for s in streams:
        for it in s: p.add(it[0])
    if dbg:
        p("s_memtime s[100:101]\ns_waitcnt lgkmcnt(0)\ns_sub_u32 s100, s100, s98")
        stamp_end(p, 6, 1, 14, 4, extra=94)
        p("v_mov_b32 v16, s96\nv_mov_b32 v17, s100\nv_mov_b32 v18, s76\nv_mov_b32 v19, s78\ns_add_u32 s92, s92, 0x20000\nbuffer_store_dwordx4 v[16:19], v20, s[88:91], s92 offen")
        p("v_mov_b32 v24, s80\nv_mov_b32 v25, s60\ns_add_u32 s92, s92, 0x4000\nbuffer_store_dwordx4 v[24:27], v20, s[88:91], s92 offen")
    p("K1_done:\ns_endpgm")
    seq, npad = p.finish(check=not rm)
    nbytes = sum(4 if (i.kind in ('wait', 'barrier', 'nop', 'branch') or (i.kind == 'salu' and not re.search(r'(0x[0-9a-f]+|\b\d{3,}\b)', i.text))) else 8 for i in seq if i.kind not in ('label', 'dir'))
    txt = render(seq).replace("K1_NLINES", str(nbytes // 128 - 16))
    stats = dict(n=len(seq), pads=npad, over=over, bytes=nbytes)
    return khead("k1_kernel") + txt, kd("k1_kernel", 256 + 4 * NBUF + 73, 256), f"; @launch kernel=k1_kernel grid=(256,1,1) block=(256,1,1) lds={max(NPOS*16384, XB + 131072 + 20480)}", stats
def HT(u, tt): return TMP + 8 * (u % 2) + 4 * tt
if __name__ == "__main__":
    a, b, c, st = gen_k1()
    import sys
    print(st, file=sys.stderr)
    print(a)
```

```python
from asmfw import *
from common import *

HC1, XR, CHSZ = 4160, 8320, 12928
YB, YP = 8 * CHSZ, 2112
K2_LDS = YB + 8 * YP
SETS = [[0, 3, 4, 7], [1, 2, 5, 6]]

def conv_body(p, hf, dbg=False):
    tiles = SETS[hf]; mx = max(tiles)
    ACC, A, B = 0, 0, 0
    ACC = 16; A = 32; B = 64
    AB = [8, 9, 10, 11]; BB = 12; KB = 13; YA = 14
    def rdA(i, rho):
        o = 128 * (i & 1) + 16 * rho; r = A + 4 * i
        a = p(f"ds_read2_b32 v[{r}:{r+1}], v{AB[i>>1]} offset0:{o} offset1:{o+1}")
        b = p(f"ds_read2_b32 v[{r+2}:{r+3}], v{AB[i>>1]} offset0:{o+2} offset1:{o+3}")
        return b
    def rdB(j, rho):
        u = 8 * j - rho; r = B + 4 * j
        return p(f"ds_read_b128 v[{r}:{r+3}], v{BB} offset:{3584 - 64*u}")
    opA, opB = {}, {}
    for i in range(mx + 1):
        opA[i] = rdA(i, 0); opB[mx - i] = rdB(mx - i, 0)
    first = set()
    for rho in range(8):
        for i in range(mx + 1):
            js = sorted([n - i for n in tiles if n - i >= 0], reverse=True)
            for j in js:
                n = i + j; t = tiles.index(n); acc = ACC + 4 * t
                p.wl([opA[i], opB[j]])
                c = f"v[{acc}:{acc+3}]" if t in first else "0"
                first.add(t)
                p(f"v_mfma_f32_16x16x32_bf16 v[{acc}:{acc+3}], v[{A+4*i}:{A+4*i+3}], v[{B+4*j}:{B+4*j+3}], {c}")
            if rho < 7:
                opA[i] = rdA(i, rho + 1); opB[mx - i] = rdB(mx - i, rho + 1)
    kv = [p(f"ds_read_b64 v[{32+2*t}:{33+2*t}], v{KB} offset:{3584 - 512*n}") for t, n in enumerate(tiles)]
    for t, n in enumerate(tiles):
        p.wl(kv[t]); a = ACC + 4 * t; k = 32 + 2 * t
        p(f"v_and_b32 v44, 0xffff0000, v{k+1}\nv_lshlrev_b32 v45, 16, v{k+1}\nv_and_b32 v46, 0xffff0000, v{k}\nv_lshlrev_b32 v47, 16, v{k}")
        for r in range(4): p(f"v_fmac_f32 v{a+r}, v{44+r}, v15")
        p(f"v_cvt_pk_bf16_f32 v{48+2*t}, v{a}, v{a+1}\nv_cvt_pk_bf16_f32 v{49+2*t}, v{a+2}, v{a+3}")
        p(f"ds_write_b64 v{YA}, v[{48+2*t}:{49+2*t}] offset:{512*t}")
    p("s_waitcnt lgkmcnt(0)")
    if dbg: stamp_end(p, 12, 2, 28, 16, extra=94)
    p("s_barrier\ns_endpgm")

def gen_k2(nsplit=16, rflags="nt", dbg=False):
    out = khead("k2_kernel")
    p = Prog()
    p("s_cmp_ge_u32 s2, 144\ns_cbranch_scc1 K2_done")
    p(f"s_load_dwordx2 s[4:5], s[0:1], {KA_Q}")
    p(f"s_load_dwordx4 s[8:11], s[0:1], {KA_SSMK}")
    p(f"s_load_dwordx2 s[6:7], s[0:1], {KA_OUT}")
    p(f"s_load_dwordx2 s[12:13], s[0:1], {KA_WS}")
    if dbg: stamp_begin(p)
    p("v_lshrrev_b32 v1, 6, v0\nv_and_b32 v2, 63, v0")
    p("v_readfirstlane_b32 s28, v1")
    p("s_and_b32 s29, s2, 7\ns_lshr_b32 s30, s2, 3\ns_mul_i32 s29, s29, 9\ns_lshr_b32 s31, s30, 1\ns_add_u32 s29, s29, s31\ns_and_b32 s30, s30, 1")
    p("v_lshlrev_b32 v3, 4, v2")
    p("v_lshrrev_b32 v4, 4, v2\nv_and_b32 v5, 15, v2")
    p("s_cmp_ge_u32 s28, 8\ns_waitcnt lgkmcnt(0)\ns_cbranch_scc1 K2_red")
    srd(p, 16, 8, NX); srd(p, 20, 12, NX, WS_KVT); srd(p, 24, 10, D * 2)
    p("s_lshl_b32 s32, s29, 3\ns_add_u32 s32, s32, s28")
    p(f"s_lshl_b32 s33, s32, 12\ns_mul_i32 s34, s28, {CHSZ}")
    p(f"s_add_u32 m0, s34, {XR}")
    hl = []
    for z in range(4):
        p(f"buffer_load_dwordx4 v[{32+8*z}:{35+8*z}], v3, s[16:19], s33 offen offset:{1024*z}")
        hl.append(p(f"buffer_load_dword v{36+8*z}, v3, s[16:19], s33 offen offset:{1024*z+16}"))
    xd = [p(f"buffer_load_dwordx4 v3, s[20:23], s33 offen offset:{1024*z} lds") for z in range(4)]
    p("s_lshl_b32 s35, s32, 1\nv_mov_b32 v6, s35")
    dl = p("buffer_load_ushort v15, v6, s[24:27], 0 offen")
    p(f"v_and_b32 v6, 1, v5\nv_cmp_eq_u32 vcc, 1, v6\nv_mov_b32 v7, {HC1}\nv_cndmask_b32 v7, v7, 2, vcc")
    p("v_lshl_add_u32 v7, v5, 1, v7\nv_lshl_add_u32 v7, v4, 4, v7\nv_add_u32 v8, s34, v7")
    p("v_add_u32 v9, 1024, v8\nv_add_u32 v10, 2048, v8\nv_add_u32 v11, 3072, v8")
    p(f"s_add_u32 s36, s34, {XR+480}\nv_lshlrev_b32 v6, 5, v5\nv_sub_u32 v12, s36, v6\nv_lshl_add_u32 v12, v4, 4, v12")
    p(f"s_add_u32 s36, s34, {XR+504}\nv_sub_u32 v13, s36, v6\nv_lshlrev_b32 v7, 3, v4\nv_sub_u32 v13, v13, v7")
    p(f"s_mul_i32 s36, s28, {YP}\ns_add_u32 s36, s36, {YB}\nv_add_u32 v14, s36, v6\nv_add_u32 v14, v14, v7")
    p("v_mov_b32 v64, 0\nv_mov_b32 v65, 0\nv_mov_b32 v66, 0")
    p(f"v_lshlrev_b32 v6, 3, v2\nv_add_u32 v6, s34, v6\nds_write_b64 v6, v[64:65] offset:{XR+4096}")
    p("v_add_u32 v67, s34, v3")
    p.wv(hl[0])
    p("v_readfirstlane_b32 s37, v32\ns_lshl_b32 s37, s37, 16\nv_writelane_b32 v66, s37, 7")
    p("v_lshlrev_b32 v6, 2, v2\nv_add_u32 v6, s34, v6\ns_mov_b64 exec, 0xff")
    p(f"ds_write_b32 v6, v64\nds_write_b32 v6, v66 offset:{HC1}\ns_mov_b64 exec, -1")
    for z in range(4):
        p.wv(hl[z]); r = 32 + 8 * z
        p(f"ds_write_b128 v67, v[{r}:{r+3}] offset:{32+1024*z}")
        for e in range(4): p(f"v_alignbyte_b32 v{68+4*z+e}, v{r+e+1}, v{r+e}, 2")
        p(f"ds_write_b128 v67, v[{68+4*z}:{71+4*z}] offset:{HC1+32+1024*z}")
    p("s_waitcnt vmcnt(0) lgkmcnt(0)")
    p("v_lshlrev_b32 v15, 16, v15")
    if dbg: p("s_memrealtime s[94:95]\ns_waitcnt lgkmcnt(0)")
    p("s_cmp_eq_u32 s30, 1\ns_cbranch_scc1 K2_conv1")
    seq, _ = p.finish(); out += render(seq)
    p = Prog(); conv_body(p, 0, dbg); seq, _ = p.finish(); out += render(seq)
    p = Prog(); p("K2_conv1:"); conv_body(p, 1, dbg); seq, _ = p.finish(); out += render(seq)
    p = Prog()
    p("K2_red:")
    srd(p, 16, 12, PART_BYTES, WS_PART); srd(p, 20, 4, NX); srd(p, 24, 12, S * 8, WS_STATS); srd(p, 40, 6, NX)
    p("s_sub_u32 s28, s28, 8")
    p("s_mov_b32 s32, 0x7430\ns_cmp_eq_u32 s30, 1\ns_cselect_b32 s32, 0x6521, s32\ns_lshr_b32 s33, s28, 1\ns_lshl_b32 s33, s33, 2\ns_lshr_b32 s32, s32, s33\ns_and_b32 s32, s32, 15")
    p("s_lshl_b32 s32, s32, 8\ns_and_b32 s33, s28, 1\ns_lshl_b32 s33, s33, 7\ns_add_u32 s32, s32, s33")
    p("s_lshl_b32 s33, s29, 15\ns_lshl_b32 s34, s32, 4\ns_add_u32 s33, s33, s34\ns_mov_b32 s44, s33")
    PB = 32
    def pl(j, z, sreg): return p(f"buffer_load_dwordx4 v[{PB+4*j}:{PB+4*j+3}], v3, s[16:19], s{sreg} offen offset:{1024*z} {rflags}")
    ld = {}
    for j in range(nsplit):
        ld[(j, 0)] = pl(j, 0, 33)
        p(f"s_add_u32 s33, s33, {72*32768}")
    p(f"s_mul_i32 s35, s32, {ROWB}\ns_lshl_b32 s36, s29, 4\ns_add_u32 s35, s35, s36\ns_add_u32 s36, s35, {64*ROWB}")
    p(f"v_mul_u32_u24 v6, {ROWB}, v2")
    xl = [p(f"buffer_load_dwordx4 v[{96+4*z}:{99+4*z}], v6, s[20:23], s{35+z} offen") for z in range(2)]
    p("v_lshlrev_b32 v7, 3, v2\ns_lshl_b32 s37, s32, 3")
    sl = [p(f"buffer_load_dwordx2 v[{104+2*z}:{105+2*z}], v7, s[24:27], s37 offen offset:{512*z}") for z in range(2)]
    p(f"v_lshrrev_b32 v8, 2, v5\nv_and_b32 v9, 3, v5\nv_mul_u32_u24 v8, {YP}, v8\nv_lshl_add_u32 v8, v9, 3, v8\nv_lshl_add_u32 v8, v4, 5, v8")
    p(f"s_lshl_b32 s38, s28, 8\ns_add_u32 s38, s38, {YB}\nv_add_u32 v8, s38, v8")
    p("s_mov_b32 s46, 0x00003f80\ns_mov_b32 s47, 0x3f800000\ns_mov_b32 s48, 0xbfb8aa3b")
    O = [16, 24]
    def accum(j, z):
        p.wv(ld[(j, z)])
        for e in range(4):
            for hi in range(2):
                c = "0" if j == 0 else f"v{O[z]+2*e+hi}"
                p(f"v_dot2_f32_bf16 v{O[z]+2*e+hi}, v{PB+4*j+e}, s{46+hi}, {c}")
    SS = [108, 116]
    def spart(z):
        y = [p(f"ds_read_b64_tr_b16 v[{10+2*b}:{11+2*b}], v8 offset:{4*YP*b + 128*z}") for b in range(2)]
        m, r = 104 + 2 * z, 105 + 2 * z
        for e in range(4):
            x = 96 + 4 * z + e; s0 = SS[z] + 2 * e
            p(f"v_lshlrev_b32 v{s0}, 16, v{x}\nv_and_b32 v{s0+1}, 0xffff0000, v{x}")
            p(f"v_sub_f32 v{s0}, v{s0}, v{m}\nv_sub_f32 v{s0+1}, v{s0+1}, v{m}\nv_cvt_pk_bf16_f32 v14, v{s0}, v{s0+1}")
            p(f"v_lshlrev_b32 v{s0}, 16, v14\nv_and_b32 v{s0+1}, 0xffff0000, v14")
            p(f"v_mul_f32 v{s0}, v{s0}, v{r}\nv_mul_f32 v{s0+1}, v{s0+1}, v{r}\nv_cvt_pk_bf16_f32 v14, v{s0}, v{s0+1}")
            p(f"v_lshlrev_b32 v{s0}, 16, v14\nv_and_b32 v{s0+1}, 0xffff0000, v14")
            if e == 0: p.wl(y[0])
            if e == 2: p.wl(y[1])
            p(f"v_lshlrev_b32 v14, 16, v{10+e}\nv_and_b32 v15, 0xffff0000, v{10+e}")
            p(f"v_mul_f32 v{s0}, v{s0}, v14\nv_mul_f32 v{s0+1}, v{s0+1}, v15")
    def final(z):
        r = 105 + 2 * z
        p(f"v_mul_f32 v124, v{r}, v{r}\nv_mul_f32 v125, s48, v124")
        T = 10
        for h in range(2):
            for k in range(4): p(f"v_mul_f32 v{T+k}, v{O[z]+4*h+k}, v125")
            for k in range(4): p(f"v_exp_f32 v{T+k}, v{T+k}")
            for k in range(4): p(f"v_mul_f32 v{O[z]+4*h+k}, v{O[z]+4*h+k}, v124")
            for k in range(4): p(f"v_add_f32 v{T+k}, 1.0, v{T+k}")
            for k in range(4): p(f"v_rcp_f32 v{T+k}, v{T+k}")
            for k in range(4): p(f"v_mul_f32 v{O[z]+4*h+k}, v{O[z]+4*h+k}, v{SS[z]+4*h+k}")
            for k in range(4):
                x = 96 + 4 * z + 2 * h + k // 2
                p(f"v_lshlrev_b32 v{SS[z]+4*h+k}, 16, v{x}" if k % 2 == 0 else f"v_and_b32 v{SS[z]+4*h+k}, 0xffff0000, v{x}")
            for k in range(4): p(f"v_fmac_f32 v{SS[z]+4*h+k}, v{O[z]+4*h+k}, v{T+k}")
            for k in range(2): p(f"v_cvt_pk_bf16_f32 v{96+4*z+2*h+k}, v{SS[z]+4*h+2*k}, v{SS[z]+4*h+2*k+1}")
        p(f"buffer_store_dwordx4 v[{96+4*z}:{99+4*z}], v6, s[40:43], s{35+z} offen")
    for j in range(nsplit):
        accum(j, 0)
        ld[(j, 1)] = pl(j, 1, 44)
        p(f"s_add_u32 s44, s44, {72*32768}")
    p.wv(sl[1])
    if dbg: p("s_memrealtime s[94:95]\ns_waitcnt lgkmcnt(0)")
    p("s_barrier")
    spart(0); final(0); spart(1)
    for j in range(nsplit): accum(j, 1)
    final(1)
    if dbg:
        p("s_add_u32 s28, s28, 8"); stamp_end(p, 12, 2, 28, 16, extra=94)
    p("K2_done:\ns_endpgm")
    seq, _ = p.finish(); out += render(seq)
    return out, kd("k2_kernel", 128, 128), f"; @launch kernel=k2_kernel grid=(144,1,1) block=(1024,1,1) lds={K2_LDS}"
if __name__ == "__main__":
    print(gen_k2()[0])
```

```python
from build import build
from asmfw import *
from common import *
def probe(path, a, b, mult=8, k1kw={}, k2kw={}):
    build(path, k1kw, k2kw, dbg=True)
    t = open(path).read()
    p = Prog()
    p("s_cmp_ge_u32 s2, 1\ns_cbranch_scc1 K3_done")
    p(f"s_load_dwordx2 s[4:5], s[0:1], {KA_WS}\ns_waitcnt lgkmcnt(0)")
    p(f"s_add_u32 s4, s4, 0x4000000\ns_addc_u32 s5, s5, 0")
    p(f"s_load_dword s6, s[4:5], {a}\ns_load_dword s7, s[4:5], {b}\ns_memrealtime s[8:9]\ns_waitcnt lgkmcnt(0)")
    p(f"s_sub_u32 s6, s7, s6\ns_mul_i32 s6, s6, {mult}\ns_min_u32 s6, s6, 50000")
    p("K3_loop:\ns_memrealtime s[10:11]\ns_waitcnt lgkmcnt(0)\ns_sub_u32 s10, s10, s8\ns_cmp_lt_u32 s10, s6\ns_cbranch_scc1 K3_loop")
    p("K3_done:\ns_endpgm")
    i = t.index(".amdgcn_target")
    t = t[:i] + "; @launch kernel=k3_kernel grid=(1,1,1) block=(64,1,1) lds=0\n" + t[i:]
    i = t.index('.section .rodata')
    t = t[:i] + khead("k3_kernel") + render(p.seq) + t[i:] + kd("k3_kernel", 8, 8)
    open(path, "w").write(t)
if __name__ == "__main__":
    kw = dict(earlybars=(21,))
    wg = 40
    K1 = 0x10000 + wg * 64; E = 0x30000 + wg * 64; K2 = 0x20000 + wg * 256
    probe("p0.s", K1, K1, k1kw=kw)
    probe("p1.s", K1, K1 + 12, k1kw=kw)
    probe("p2.s", K1 + 12, K1 + 8, k1kw=kw)
    probe("p3.s", K1 + 8, K2, k1kw=kw)
    probe("p4.s", K2, K2 + 8 * 16 + 8, k1kw=kw)
    probe("p5.s", K1, E, k1kw=kw)
```

```python
NAME = "recurrent_scan__ssm_conv_h3__glu_gated_bilinear__prompt"
S, D, F = 2048, 576, 4608
ROWB = D * 2
WROWB = F * 2
NX = S * D * 2
NW = D * F * 2
WS_KVT = 0
WS_STATS = 0x240000
WS_PART = 0x280000
PART_BYTES = 16 * 72 * 2048 * 16
WS_HX = 0x2800000
HX_BYTES = 256 * 4 * 18432
WS_FLAG = 0x3c00000
KA_Q, KA_K, KA_V, KA_SHK, KA_SSMK, KA_SSMD, KA_BX, KA_WG, KA_WU, KA_WD, KA_OUT, KA_DBG, KA_WS = [8 * i for i in range(13)]

def srd(p, d, b, nbytes, add=0):
    if add == 0:
        p(f"s_mov_b32 s{d}, s{b}\ns_mov_b32 s{d+1}, s{b+1}")
    elif add > 0:
        p(f"s_add_u32 s{d}, s{b}, {add}\ns_addc_u32 s{d+1}, s{b+1}, 0")
    else:
        p(f"s_sub_u32 s{d}, s{b}, {-add}\ns_subb_u32 s{d+1}, s{b+1}, 0")
    p(f"s_mov_b32 s{d+2}, {nbytes}\ns_mov_b32 s{d+3}, 0x20000")

def stamp_begin(p):
    p("s_memrealtime s[98:99]")
def stamp_end(p, wsreg, slot, wavereg, nwaves, extra=None):
    p("s_memrealtime s[84:85]\ns_waitcnt vmcnt(0) lgkmcnt(0)\ns_memrealtime s[86:87]\ns_waitcnt lgkmcnt(0)")
    p(f"s_mov_b32 s88, s{wsreg}\ns_mov_b32 s89, s{wsreg+1}\ns_mov_b32 s90, 0x10000000\ns_mov_b32 s91, 0x20000")
    p(f"v_mov_b32 v16, s98\nv_mov_b32 v17, s84\nv_mov_b32 v18, s86\nv_mov_b32 v19, s{extra if extra else 84}")
    p(f"s_mul_i32 s92, s2, {nwaves*16}\ns_lshl_b32 s93, s{wavereg}, 4\ns_add_u32 s92, s92, s93\ns_add_u32 s92, s92, {0x4000000 + slot*0x10000}\nv_mov_b32 v20, 0")
    p("buffer_store_dwordx4 v[16:19], v20, s[88:91], s92 offen")
```

```python
from asmfw import *
from common import *

def X(tt, ks): return 16 + (tt * 18 + ks) * 4
def ACC(u, mat, tt): return 160 + ((u * 2 + mat) * 2 + tt) * 4
def ACC2(b, u, tt): return 16 + ((b * 4 + u) * 2 + tt) * 4
NBUF = 12
def H(tt, s, par=0): return 4 * NBUF + (tt * 9 + s) * 4 + (76 if par else 0)
TMP = 224
def HT(u, tt): return TMP + 8 * (u % 2) + 4 * tt
RA = 240
V1A, V1B = 252, 253
VPF = VHV = 254
VT_ = V2V = 255
VFL, LANE, VL, VFD, VFV = 1, 2, 3, 4, 5
MT = [6, 7]; VH2, VS = 6, 7
NM4 = [8, 12]; RAH3 = [8, 10, 12]
DUM = 120
SEL = [196, 200]
STASH = {k: 204 + n for n, k in enumerate(['VHV', 'V2V', 'VH2', 'VS', 'RAH0', 'RAH1', 'VPD', 'VK', 'SA', 'SS', 'VSM', 'VST'])}
SHK = 216
NAG = 222
KROW = 32 * WROWB
MF = "v_mfma_f32_16x16x32_bf16"
OOB = "0x40000000"
NPOS = 9; C = 36; WINS = [0, 3, 6]
XB = 32768
SIDE = NPOS * 16384

def gen_k1(LA=7, WE=4, PB=64, amap=16, stflags="sc1", wflags="", dbg=False, xflags='', earlybars=(21,), GU=4, XFL=4,
           kvflags='', WAITG=90, SKEW=(200, 150, 90), CHK=(130, 130, 80), marks=(), PFG=(60, 250, 480, 560), NPRO=8, CAH=2, tlb=1, ssmpf=1, TLBG=(150, 170, 200, 280, 310, 400, 450, 520, 640, 780, 840), NG=(190, 400), SD=(230, 410, 700), SC=(350, 660, 930)):
    p = Prog()
    def stash(k, v): p(f"v_accvgpr_write_b32 a{STASH[k]}, v{v}")
    def unst(k, v): return I(f"v_accvgpr_read_b32 v{v}, a{STASH[k]}")
    p("s_cmp_ge_u32 s2, 256\ns_cbranch_scc1 K1_done")
    p(f"s_load_dwordx2 s[4:5], s[0:1], {KA_Q}\ns_load_dwordx4 s[8:11], s[0:1], {KA_WG}\ns_load_dwordx2 s[12:13], s[0:1], {KA_WD}")
    p(f"s_load_dwordx2 s[6:7], s[0:1], {KA_WS}\ns_load_dwordx2 s[78:79], s[0:1], {KA_DBG}\ns_load_dwordx2 s[80:81], s[0:1], {KA_SSMK}")
    p(f"s_load_dwordx4 s[68:71], s[0:1], {KA_K}\ns_load_dwordx2 s[72:73], s[0:1], {KA_SHK}")
    p("s_memrealtime s[94:95]")
    if dbg: stamp_begin(p)
    p("s_getpc_b64 s[64:65]\ns_lshr_b32 s16, s2, 3\ns_and_b32 s20, s16, 1\ns_mul_i32 s20, s20, 192")
    p("v_add_u32 v5, s20, v0\nv_cmp_gt_u32 vcc, 64, v0\nv_lshrrev_b32 v1, 6, v0\nv_and_b32 v2, 63, v0\nv_cndmask_b32 v5, v5, v0, vcc\nv_min_u32 v5, K1_NLINES, v5\nv_lshlrev_b32 v5, 7, v5")
    p(f"global_load_dword a{DUM}, v5, s[64:65]", tag='dummy')
    p("v_readfirstlane_b32 s14, v1\ns_and_b32 s15, s2, 7")
    if amap == 16:
        p("s_lshr_b32 s17, s16, 1\ns_and_b32 s18, s16, 1\ns_lshl_b32 s19, s15, 1\ns_add_u32 s18, s18, s19")
    elif amap == 8:
        p("s_and_b32 s17, s15, 1\ns_lshl_b32 s17, s17, 3\ns_lshr_b32 s19, s16, 2\ns_add_u32 s17, s17, s19")
        p("s_lshr_b32 s18, s15, 1\ns_lshl_b32 s18, s18, 2\ns_and_b32 s19, s16, 3\ns_add_u32 s18, s18, s19")
    p("s_lshl_b32 s19, s17, 7\ns_lshl_b32 s20, s14, 5\ns_add_u32 s19, s19, s20")
    p("v_and_b32 v3, 15, v2\nv_lshrrev_b32 v1, 4, v2")
    XV = 188
    p(f"v_lshrrev_b32 v4, 3, v2\nv_mul_u32_u24 v4, {ROWB}, v4\nv_and_b32 v5, 7, v2\nv_xor_b32 v5, v5, v1\nv_lshl_add_u32 v{XV}, v5, 4, v4\nv_xor_b32 v5, 64, v{XV}")
    p(f"v_add_u32 v{XV+1}, {8*ROWB-1024}, v5\nv_add_u32 v{XV+2}, {16*ROWB-2048}, v{XV}\nv_add_u32 v{XV+3}, {24*ROWB-3072}, v5")
    p(f"s_mul_i32 s21, s19, {ROWB}\ns_lshl_b32 s22, s14, 15\ns_add_u32 s22, s22, {XB}")
    p("s_waitcnt lgkmcnt(0)")
    srd(p, 24, 4, NX)
    xd = {}; xr = {}
    def xdma(cb):
        if cb == 8: p.wl(xr[(1, 1)])
        p(f"s_add_u32 m0, s22, {(cb % 8)*4096}")
        if cb: p("s_add_u32 s21, s21, 128")
        for rg in range(4):
            xd[(cb, rg)] = p(f"buffer_load_dwordx4 v{XV + rg}, s[24:27], s21 offen offset:{1024*rg} {xflags} lds")
    for cb in range(XFL): xdma(cb)
    p("s_lshl_b32 s94, s94, 3\ns_or_b32 s94, s94, 4\nv_mov_b32 v6, s94\ns_lshl_b32 s20, s17, 4\ns_add_u32 s91, s20, s18\ns_and_b32 s20, s18, 3\ns_or_b32 s20, s20, s14")
    p("s_and_b32 s97, s91, 0xfc\ns_cmp_eq_u32 s20, 0\ns_cselect_b32 s20, s97, 0x1000\ns_mov_b32 s92, s78\ns_mov_b32 s93, s79\ns_mov_b32 s94, 256\ns_mov_b32 s95, 0x20000")
    p("buffer_store_dword v6, off, s[92:95], s20 sc1")
    srd(p, 28, 8, NW); srd(p, 32, 10, NW + 1024, -1024); srd(p, 36, 12, NW + 3072, -3072)
    p("s_cmp_ge_u32 s14, 2\ns_cselect_b32 s20, s10, s8\ns_cselect_b32 s23, s11, s9")
    p(f"s_sub_u32 s40, s20, 3072\ns_subb_u32 s41, s23, 0\ns_mov_b32 s42, {NW+3072}\ns_mov_b32 s43, 0x20000")
    srd(p, 44, 6, 0x10000000); srd(p, 48, 68, NX); srd(p, 84, 70, NX + 1024, -1024)
    p(f"s_mov_b32 s82, {NX}\ns_mov_b32 s83, 0x20000\ns_mov_b32 s63, 0\ns_lshl_b32 s52, s14, 12")
    p("s_and_b32 s20, s18, 1\ns_mul_i32 s53, s18, 576\ns_lshl_b32 s23, s20, 6\ns_add_u32 s54, s53, s23")
    p("s_cmp_eq_u32 s20, 1\ns_cselect_b32 s23, 0, 512\ns_add_u32 s55, s53, s23")
    p("s_mul_i32 s23, s20, 640\ns_lshl_b32 s66, s20, 6\ns_add_u32 s66, s66, 512")
    p(f"s_mul_i32 s56, s54, {ROWB//2}\ns_mul_i32 s57, s55, {ROWB//2}")
    p(f"s_xor_b32 s76, s18, 1\ns_mul_i32 s76, s76, {288*ROWB}\ns_cmp_eq_u32 s20, 0\ns_cselect_b32 s77, 0, {256*ROWB}\ns_add_u32 s77, s77, s76")
    p(f"s_cmp_eq_u32 s20, 0\ns_cselect_b32 s59, {32*ROWB}, 0\ns_add_u32 s76, s76, s59")
    p(f"s_add_u32 s61, s56, s66\ns_add_u32 s60, s76, s66\ns_sub_u32 s59, s77, {32*ROWB}\ns_cmp_ge_u32 s14, 2\ns_cselect_b32 s59, s59, s57\ns_add_u32 s59, s59, s66")
    p("s_add_u32 s56, s56, s23\ns_add_u32 s57, s57, s23\ns_add_u32 s76, s76, s23\ns_add_u32 s77, s77, s23")
    p(f"s_lshr_b32 s58, s18, 1\ns_mul_i32 s58, s58, {72*32768}\ns_lshl_b32 s20, s19, 4\ns_add_u32 s58, s58, s20\ns_add_u32 s58, s58, {WS_PART}")
    p("s_lshl_b32 s66, s66, 11\ns_add_u32 s53, s58, s66\ns_lshl_b32 s23, s23, 11\ns_add_u32 s58, s58, s23")
    p(f"s_lshl_b32 s88, s91, 2\ns_add_u32 s88, s88, s14\ns_mul_i32 s88, s88, 18432\ns_add_u32 s88, s88, {WS_HX}")
    p(f"s_lshl_b32 s90, s91, 7\ns_add_u32 s90, s90, {WS_FLAG}\ns_cmp_eq_u32 s14, 0\ns_cselect_b32 s90, s90, {OOB}\ns_xor_b32 s91, s91, 1")
    p(f"s_lshl_b32 s89, s91, 2\ns_add_u32 s89, s89, s14\ns_mul_i32 s89, s89, 18432\ns_add_u32 s89, s89, {WS_HX}\ns_lshl_b32 s91, s91, 7\ns_add_u32 s91, s91, {WS_FLAG}")
    p(f"s_lshl_b32 s96, s14, 11\ns_add_u32 s96, s96, {SIDE}\ns_lshl_b32 s71, s14, 3\ns_sub_u32 s71, 28, s71\ns_mul_i32 s71, s71, {ROWB}")
    p(f"s_and_b32 s20, s2, 3\ns_cmp_eq_u32 s20, 0\ns_cselect_b32 s75, {512*4096}, {OOB}\ns_cselect_b32 s10, 1024, {OOB}\ns_mov_b32 s74, {64*4096}\ns_lshl_b32 s70, s20, 8")
    share = amap; rows = D // share // 2; nld = -(-2592 // (share * 4))
    p("v_lshrrev_b32 v5, 3, v2\ns_lshl_b32 s20, s14, 3\nv_add_u32 v5, s20, v5")
    p(f"v_and_b32 v6, 7, v2\nv_lshlrev_b32 v7, 1, v1\nv_xor_b32 v7, v7, v6\nv_lshlrev_b32 v7, 4, v7")
    p(f"v_mul_u32_u24 v{V1A}, {WROWB}, v5\nv_add_u32 v{V1A}, v{V1A}, v7\nv_add_u32 v{V1B}, {KROW-2048}, v{V1A}")
    p(f"v_mul_u32_u24 v5, {ROWB}, v5\nv_add_u32 v5, v5, v7"); stash('V2V', 5)
    p(f"s_and_b32 s20, s17, {share-1}\ns_lshl_b32 s20, s20, 1\ns_and_b32 s23, s14, 1\ns_add_u32 s20, s20, s23\ns_mul_i32 s20, s20, {rows}")
    p(f"v_min_u32 v{VPF}, {rows-1}, v2\nv_add_u32 v{VPF}, s20, v{VPF}\nv_mul_u32_u24 v{VPF}, {WROWB}, v{VPF}")
    p(f"s_and_b32 s20, s17, {share-1}\ns_lshl_b32 s20, s20, 2\ns_add_u32 s20, s20, s14\ns_mul_i32 s20, s20, {nld}")
    p(f"v_min_u32 v5, {nld-1}, v2\nv_add_u32 v5, s20, v5\nv_min_u32 v5, 2591, v5\nv_lshlrev_b32 v5, 7, v5"); stash('VPD', 5)
    p(f"s_mul_i32 s20, s15, 2304\ns_lshl_b32 s23, s16, 2\ns_add_u32 s23, s23, s14\ns_mul_i32 s23, s23, 18\ns_add_u32 s20, s20, s23")
    p("v_min_u32 v5, 17, v2\nv_add_u32 v5, s20, v5\nv_lshlrev_b32 v5, 7, v5"); stash('VSM', 5)
    p("v_and_b32 v8, 1, v1\nv_and_b32 v6, 3, v2\nv_lshlrev_b32 v7, 1, v8\nv_xor_b32 v7, v7, v6\nv_lshlrev_b32 v7, 4, v7\nv_lshrrev_b32 v5, 2, v2")
    p(f"s_and_b32 s20, s14, 1\ns_lshl_b32 s20, s20, 4\nv_add_u32 v6, s20, v5\nv_mul_u32_u24 v6, {WROWB}, v6\nv_add_u32 v6, v6, v7"); stash('VHV', 6)
    p(f"s_lshl_b32 s20, s14, 4\nv_add_u32 v6, s20, v5\nv_mul_u32_u24 v6, {ROWB}, v6\nv_add_u32 v6, v6, v7"); stash('VH2', 6)
    p("v_lshrrev_b32 v5, 2, v3\nv_and_b32 v6, 3, v3")
    p("v_lshrrev_b32 v7, 1, v5\nv_lshl_add_u32 v7, v1, 1, v7\nv_and_b32 v7, 3, v7")
    p("v_lshl_add_u32 v9, v8, 2, v5\nv_lshlrev_b32 v9, 7, v9\nv_lshrrev_b32 v10, 1, v1\nv_lshl_add_u32 v9, v10, 12, v9\nv_lshl_add_u32 v9, v6, 3, v9")
    for u in range(4):
        p(f"v_xor_b32 v11, {u}, v7\nv_lshl_add_u32 v{RA+u}, v11, 5, v9")
        p(f"v_add_u32 v{RA+4+u}, {WINS[1]*16384}, v{RA+u}\nv_add_u32 v{RA+8+u}, {WINS[2]*16384}, v{RA+u}")
    p(f"v_lshl_add_u32 v9, v1, 2, v5\nv_lshlrev_b32 v9, 6, v9\nv_lshl_add_u32 v9, v6, 3, v9")
    p(f"v_lshl_add_u32 v11, v8, 5, v9"); stash('RAH0', 11)
    p(f"v_xor_b32 v11, 32, v11"); stash('RAH1', 11)
    p(f"v_lshlrev_b32 v11, 15, v10\nv_lshl_add_u32 v9, v8, 4, v3\nv_lshl_add_u32 v11, v9, 4, v11"); stash('VS', 11)
    p(f"v_lshlrev_b32 v11, 3, v3\nv_cmp_eq_u32 vcc, v5, v1\ns_lshl_b32 s20, s19, 3\ns_add_u32 s20, s20, {WS_STATS}\nv_add_u32 v11, s20, v11\nv_cndmask_b32 v11, {OOB}, v11, vcc"); stash('VST', 11)
    p(f"s_lshr_b32 s20, s2, 2\ns_and_b32 s23, s2, 3\ns_lshl_b32 s62, s20, 2\ns_add_u32 s62, s62, s14\ns_mul_i32 s62, s62, {8*ROWB}\ns_sub_u32 s62, s62, {4*ROWB}")
    p(f"v_lshrrev_b32 v9, 3, v2\nv_mul_u32_u24 v9, {ROWB}, v9\nv_and_b32 v11, 7, v2\nv_lshl_add_u32 v9, v11, 4, v9\nv_add_u32 v9, s62, v9"); stash('VK', 9)
    p(f"v_lshlrev_b32 v9, 11, v1\nv_lshl_add_u32 v9, v5, 7, v9\nv_lshl_add_u32 v9, v6, 3, v9\ns_lshl_b32 s62, s14, 5\ns_add_u32 s62, s62, {SIDE}\nv_add_u32 v9, s62, v9"); stash('SA', 9)
    p(f"s_lshl_b32 s66, s14, 4\nv_add_u32 v13, s66, v3\ns_lshl_b32 s23, s23, 7\nv_add_u32 v9, s23, v13\nv_lshlrev_b32 v12, 3, v9\nv_lshlrev_b32 v13, 3, v13")
    p(f"s_lshl_b32 s20, s20, 6\ns_sub_u32 s20, {4080 + WS_KVT}, s20\nv_lshlrev_b32 v9, 12, v9\nv_lshlrev_b32 v11, 4, v1\nv_sub_u32 v9, v9, v11\nv_add_u32 v9, s20, v9"); stash('SS', 9)
    XA = 14
    p(f"v_lshrrev_b32 v5, 3, v3\nv_lshlrev_b32 v5, 10, v5\nv_and_b32 v6, 7, v3\nv_lshl_add_u32 v5, v6, 7, v5\nv_add_u32 v5, s22, v5")
    p(f"v_lshrrev_b32 v6, 1, v3\nv_xor_b32 v6, v6, v1\nv_lshl_add_u32 v{XA}, v6, 4, v5\nv_xor_b32 v{XA+1}, 64, v{XA}")
    ONE, M = 160, [172, 176]
    for k in range(4): p(f"v_mov_b32 v{ONE+k}, 0x3f803f80")
    p("v_lshlrev_b32 v5, 3, v1\nv_sub_u32 v5, v3, v5\nv_and_b32 v6, 1, v3\nv_lshlrev_b32 v6, 4, v6\ns_movk_i32 s20, 0x3f80\nv_lshlrev_b32 v6, v6, s20\nv_ashrrev_i32 v5, 1, v5")
    for h in range(2):
        for dd in range(4): p(f"v_cmp_eq_i32 s[{64 + 2*(dd&1)}:{65 + 2*(dd&1)}], {dd - 8*h}, v5\nv_cndmask_b32 v{164+4*h+dd}, 0, v6, s[{64 + 2*(dd&1)}:{65 + 2*(dd&1)}]")
    p(f"s_mul_i32 s67, s18, {288*ROWB}")
    for k in range(8): p(f"v_accvgpr_write_b32 a{SEL[0]+k}, v{164+k}")
    p(f"v_lshlrev_b32 v{VL}, 4, v2\nv_cmp_eq_u32 vcc, 0, v2\nv_cndmask_b32 v{VFL}, {OOB}, v2, vcc")

    NCH = 243
    p2chunks = []
    for par, s_ in [(0, k) for k in range(8)] + [(1, 0), (1, 1)]:
        p2chunks += [('f', b, par, s_) for b in range(4)]
        if s_ % 2 == 1: p2chunks.append(('h', par, s_ - 1))
    p2chunks += [('f', b, 0, 8) for b in range(4)]
    p2chunks += [('f', 0, 1, k) for k in range(2, 6)] + [('f', 1, 1, k) for k in range(2, 6)]
    p2chunks += [('f', 0, 1, k) for k in range(6, 9)] + [('f', 1, 1, k) for k in range(6, 9)]
    p2chunks += [('h', 1, 2), ('h', 1, 4), ('h', 1, 6), ('h', 0, 8)]
    p2chunks += [('f', 2, 1, k) for k in range(2, 9)] + [('f', 3, 1, k) for k in range(2, 9)]
    def dma_instrs(n):
        c = n & 3; pos = (n >> 2) % NPOS
        pre = []
        if c == 0: pre.append(I(f"s_add_u32 m0, s52, {pos*16384}"))
        off = f"offset:{1024*c} " if c else ""
        if n < 144:
            pp, ks = n // 36, (n % 36) // 2
            if c == 0: pre.append(I(f"s_add_u32 s62, s54, {128*pp + ks*KROW}"))
            d = I(f"buffer_load_dwordx4 v{V1A if c < 2 else V1B}, s[{28 if c % 2 == 0 else 32}:{31 if c % 2 == 0 else 35}], s62 offen {off}{wflags} lds")
        elif n < 162:
            ks = n - 144
            pre.append(I(f"s_add_u32 s62, s55, {ks*KROW + 3072 - 1024*c}"))
            d = I(f"buffer_load_dwordx4 v{VHV}, s[40:43], s62 offen {off}{wflags} lds")
        else:
            kind = p2chunks[n - 162]
            if kind[0] == 'f':
                _, b, par, s = kind
                base = (56 if s < 8 else 57) + (20 if par else 0)
                pre.append(I(f"s_add_u32 s62, s{base}, {(32*s*ROWB if s < 8 else 0) + 128*b + 3072 - 1024*c}"))
                d = I(f"buffer_load_dwordx4 v{V2V}, s[36:39], s62 offen {off}{wflags} lds")
            else:
                _, par, s = kind
                base = 59 if s == 8 else (60 if par else 61)
                pre.append(I(f"s_add_u32 s62, s{base}, {(32*s*ROWB if s < 8 else 0) + 3072 - 1024*c}"))
                d = I(f"buffer_load_dwordx4 v{VH2}, s[36:39], s62 offen {off}{wflags} lds")
        return pre, d
    def pf_gu(pp):
        return [I(f"s_add_u32 s66, s{54 if pp < 4 else 55}, {128*pp if pp < 4 else 0}"),
                I(f"buffer_load_dword a{DUM}, v{VPF}, s[40:43], s66 offen offset:3072 {wflags}", tag='dummy')]
    dma = {}
    if dbg: p('s_memrealtime s[8:9]')
    def meanm(ks):
        for tt in range(2):
            p.wl(xr[(tt, ks)])
            c = "0" if ks == 0 else f"v[{M[tt]}:{M[tt]+3}]"
            p(f"{MF} v[{M[tt]}:{M[tt]+3}], v[{ONE}:{ONE+3}], v[{X(tt,ks)}:{X(tt,ks)+3}], {c}")
    for cb in range(XFL, 8): xdma(cb)
    if dbg: p('s_waitcnt lgkmcnt(0)')
    for cb in range(9):
        p.wv(xd[(cb, 3)])
        for ks in (2 * cb, 2 * cb + 1):
            for tt in range(2):
                xr[(tt, ks)] = p(f"ds_read_b128 v[{X(tt,ks)}:{X(tt,ks)+3}], v{XA+(ks&1)} offset:{(cb % 8)*4096 + tt*2048}")
        if cb == 0:
            xdma(8)
            for n in range(NPRO):
                pre, d = dma_instrs(n)
                for i in pre: p.add(i)
                dma[n] = p.add(d)
            for i in pf_gu(0) + pf_gu(1): p.add(i)
            p(f"s_mov_b32 s92, s72\ns_mov_b32 s93, s73\ns_mov_b32 s94, {D*8}")
            p("s_movk_i32 s20, 0x1000")
            shk = [p(f"buffer_load_dwordx2 a[{SHK+2*n}:{SHK+2*n+1}], v{12 if n < 2 else 13}, s[92:95], {'0' if n < 2 else 's20'} offen offset:{512*(n%2)}") for n in range(3)]
            p("s_mov_b32 s24, s78\ns_mov_b32 s25, s79\ns_mov_b32 s26, 256")
        else: meanm(2 * cb - 2); meanm(2 * cb - 1)
    meanm(16); meanm(17)
    if dbg: p("s_memrealtime s[100:101]\ns_waitcnt lgkmcnt(0)\ns_mov_b32 s13, s100")
    for tt in range(2):
        p(f"v_mul_f32 v{MT[tt]}, 0x3ae38e39, v{M[tt]}")
        p(f"v_cvt_pk_bf16_f32 v{NM4[tt]}, v{MT[tt]}, v{MT[tt]}\nv_lshlrev_b32 v{NM4[tt]}, 16, v{NM4[tt]}\nv_xor_b32 v{NM4[tt]}, 0x80000000, v{NM4[tt]}")
        for k in range(1, 4): p(f"v_mov_b32 v{NM4[tt]+k}, v{NM4[tt]}")
    cen = []
    for k, (tt, ks) in enumerate([(tt, ks) for ks in range(18) for tt in range(2)]):
        t = TMP + 8 * (k % 2); x = X(tt, ks)
        mf = [I(f"{MF} v[{t+4*h}:{t+4*h+3}], a[{SEL[h]}:{SEL[h]+3}], v[{x}:{x+3}], v[{NM4[tt]}:{NM4[tt]+3}]") for h in range(2)]
        cv = [I(f"v_cvt_pk_bf16_f32 v{x+e}, v{t+2*e}, v{t+2*e+1}") for e in range(4)]
        cen.append((tt, ks, mf, cv))
    for k in range(2 * CAH):
        for i in cen[k][2]: p.add(i)
        if k:
            for i in cen[k - 1][3]: p.add(i)

    frags = []
    def lds(n):
        c = n & 3; pos = (n >> 2) % NPOS; w = pos // 3
        return w, (pos - WINS[w]) * 16384 + c * 1024
    def order(nu, first):
        o = [(ks, u) for ks in range(GU) for u in range(nu)] if first else [(ks, u) for u in range(nu) for ks in range(GU)]
        o += [(ks, u) for ks in range(GU, 18 - GU) for u in range(nu)]
        return o + [(ks, u) for u in range(nu) for ks in range(18 - GU, 18)]
    for pp in range(4):
        for ks, u in order(4, pp == 0):
            for mat in range(2):
                n = pp * 36 + ks * 2 + mat; win, off = lds(n)
                frags.append(dict(n=n, ra=RA + win * 4 + u, o1=off, o2=off + 8192,
                                  mf=[(ACC(u, mat, tt), f"v[{X(tt,ks)}:{X(tt,ks)+3}]", ks == 0) for tt in range(2)], key=('p', pp, ks, u, mat)))
    for ks, u in order(2, False):
        for mat in range(2):
            n = 144 + ks; win, off = lds(n)
            frags.append(dict(n=n, ra=RAH3[win] + u, o1=off + mat * 8192, o2=off + mat * 8192 + 4096,
                              mf=[(ACC(u, mat, tt), f"v[{X(tt,ks)}:{X(tt,ks)+3}]", ks == 0) for tt in range(2)], key=('p', 4, ks, u, mat)))
    seen = set(); lastq = {}
    for ci, kind in enumerate(p2chunks):
        n = 162 + ci; win, off = lds(n)
        if kind[0] == 'f':
            _, b, par, s = kind
            items = [(b, u, par, s, RA + win * 4 + u, off, off + 8192) for u in range(4)]
        else:
            _, par, s = kind
            ks2 = [(par, s), (par, s + 1)] if s < 8 else [(0, 8), (1, 8)]
            items = [(4, u, pr, ss, RAH3[win] + u, off + m * 8192, off + m * 8192 + 4096) for m, (pr, ss) in enumerate(ks2) for u in range(2)]
        for b, u, par, s, ra, o1, o2 in items:
            frags.append(dict(n=n, ra=ra, o1=o1, o2=o2, mf=[(ACC2(b, u, tt), f"a[{H(tt,s,par)}:{H(tt,s,par)+3}]", (b, u) not in seen) for tt in range(2)], key=('q', b, par, s, u)))
            seen.add((b, u)); lastq[(b, u)] = len(frags) - 1
    NF = len(frags); NM = 2 * NF
    fidx = {f['key']: k for k, f in enumerate(frags)}
    first_read = {}; last_use = {}
    for k, f in enumerate(frags):
        first_read.setdefault(f['n'], 2 * (k - LA) - 1); last_use[f['n']] = 2 * k + 1
    b0 = PB - 2 * LA - 2
    while b0 % 8 != 5: b0 -= 1
    bars = sorted(set(list(earlybars) + list(range(b0, NM - 2 * LA, PB))))
    reads = [[] for _ in range(NM)]; post = [[] for _ in range(NM)]
    rd = {}
    def mkread(k, h):
        f = frags[k]; b = 4 * (k % NBUF) + 2 * h
        return I(f"ds_read_b64_tr_b16 a[{b}:{b+1}], v{f['ra']} offset:{f['o1'] if h == 0 else f['o2']}")
    need0 = [n for n in range(NCH) if first_read[n] <= bars[0]]
    p.wv([dma[n] for n in need0]); p("s_barrier")
    if dbg: p("s_memrealtime s[64:65]\ns_memtime s[4:5]\ns_waitcnt lgkmcnt(0)")
    for k in range(LA):
        for h in range(2): rd[(k, h)] = p.add(mkread(k, h))
    for i in cen[2 * CAH - 1][3]: p.add(i)
    for k in range(LA, NF):
        for h in range(2):
            rd[(k, h)] = mkread(k, h); reads[2 * (k - LA) + h].append(rd[(k, h)])
    p.wl(rd[(WE - 1, 1)])
    for k in range(WE, NF, WE):
        post[2 * k - 1].append(waitL(rd[(min(k + WE - 1, NF - 1), 1)]))
    streams = []
    lastg = -2; dsched = {}; sdm = {}; sgap = {}
    sideat = [min(b for b in bars if b >= x) for x in SD]
    for n in range(NPRO, NCH):
        e = (min(b for b in bars if b >= last_use[n - C]) + 1) if n >= C else 0
        behind = 8 * (n - C + PB // 8) < lastg
        g = max(e + 2, lastg + (4 if behind else 8))
        while g % 4 != 2: g += 1
        pg = lastg; lastg = g
        pre, d = dma_instrs(n); dma[n] = d; dsched[n] = g
        if n & 3 == 0 and sideat and pg >= sideat[0]:
            u = 3 - len(sideat); sideat.pop(0)
            so = 's70' if u < 2 else 's10'
            sdm[u] = [I(f"buffer_load_dwordx4 v{VT_}, s[48:51], {so} offen {kvflags} lds"),
                      I(f"buffer_load_dwordx4 v{VT_}, s[84:87], {so} offen offset:1024 {kvflags} lds"),
                      I(f"buffer_load_dwordx4 v{VT_}, s[48:51], {so} offen {kvflags} lds")]
            pre = [unst('VK', VT_), I("s_mov_b32 m0, s96")] + ([I(f"s_add_u32 s70, s70, 128")] if u == 1 else []) + [sdm[u][0], I(f"v_add_u32 v{VT_}, {4*ROWB}, v{VT_}"), sdm[u][1],
                   I(f"s_mov_b32 m0, {SIDE + 8192}"), I(f"v_add_u32 v{VT_}, s71, v{VT_}"), sdm[u][2]] + pre
            sgap[u] = g
        streams.append([[i, max(e, pg + 1), g - 2] for i in pre] + [[d, g, g]])
    for bi, b in enumerate(bars):
        nxt = bars[bi + 1] if bi + 1 < len(bars) else NM + 100
        need = [n for n in range(NCH) if b < first_read[n] <= nxt]
        for n in need: assert n < NPRO or dsched[n] < b, (n, b)
        if need: post[b].append(waitV([dma[n] for n in need]))
        post[b].append(I("s_barrier"))
    st = []
    for k in range(2 * CAH, 36):
        tt, ks, mf, cv = cen[k]
        fu = 2 * min(fidx[('p', 0, ks, u, 0)] for u in range(4)) + tt
        e = max(0, int(6.5 * (k - 2 * CAH)) - 8)
        st += [[i, e, min(fu - 12, 214)] for i in mf]
        if k > 2 * CAH: st += [[i, e, min(pfu - 3, 218)] for i in cen[k - 1][3]]
        pfu = fu
    st += [[i, 0, 221] for i in cen[35][3]]
    st += [[[I("s_cmp_lt_u32 s18, 2"), I("s_cbranch_scc1 K1_stat"), I("K1_statback:")], 0, 226]]
    streams.append(st)
    for pp in range(2, 5): streams.append([[i, PFG[pp-2], PFG[pp-2] + 20] for i in pf_gu(pp)])
    assert nld <= 64
    streams.append([[unst('VPD', VT_), PFG[3], PFG[3] + 4], [I(f"buffer_load_dword a{DUM}, v{VT_}, s[36:39], s67 offen offset:3072 {wflags}", tag='dummy'), PFG[3], PFG[3] + 10]])
    if ssmpf: streams.append([[unst('VSM', VFD), 1700, 1710], [I(f"buffer_load_dword a{DUM}, v{VFD}, s[80:83], 0 offen", tag='dummy'), 1700, 1720]])
    if tlb:
        T = [(48, [f"s_lshr_b32 s3, s2, 2", f"s_mul_i32 s3, s3, {32*ROWB}"], 's3'), (84, ["s_add_u32 s3, s3, 1024"], 's3'), (44, [], 's88'),
             (44, ["s_and_b32 s3, s2, 3", "s_lshl_b32 s3, s3, 19"], 's3'), (36, [], 's56'), (36, [f"s_add_u32 s3, s76, {255*ROWB}"], 's3'),
             (44, [], 's91'), (44, [], 's89'), (44, [], 's58'), (44, [f"s_add_u32 s3, s58, {31*32768}"], 's3'), (80, [f"s_mul_i32 s3, s15, {72*4096}"], 's3')]
        st = []
        for (r, pre, so), g in zip(T, TLBG):
            st += [[I(x), g - 8, g] for x in pre] + [[I(f"buffer_load_dword a{DUM}, off, s[{r}:{r+3}], {so}{' offset:3072' if r == 36 else ''}", tag='dummy'), g, g + 8]]
        streams.append(st)
    streams.append([[unst('VHV', VHV), 700, dsched[144] - 10]])
    streams.append([[unst('V2V', V2V), dsched[162] - 30, dsched[162] - 8], [unst('VH2', VH2), 0, dsched[162] - 6], [unst('VS', VS), 0, dsched[162] - 4]])
    g = first_read[144]
    streams.append([[unst('RAH0', 8), g - 24, g - 4], [unst('RAH1', 9), 0, g - 4]] + [[I(f"v_add_u32 v{RAH3[w]+u}, {WINS[w]*16384}, v{8+u}"), 0, g - 3] for w in (1, 2) for u in range(2)])
    for n in range(3):
        bg = min(b for b in bars if b >= SC[n]); post[bg].insert(0, waitV(sdm[n] + shk))
        e = bg + 1; dl = e + 125
        KD, VD, W, KF, O, VF = 10, TMP, TMP + 6, TMP + 10, TMP + 4, TMP + 15
        rq = [I(f"ds_read_b64_tr_b16 v[{KD+2*k}:{KD+2*k+1}], v8 offset:{[0, 512, 2048][k]}") for k in range(3)] + [I(f"ds_read_b64_tr_b16 v[{VD+2*k}:{VD+2*k+1}], v8 offset:{1024+512*k}") for k in range(2)]
        L = [unst('SA', 8)] + rq
        L += [I(f"v_accvgpr_read_b32 v{O}, a{SHK+2*n}"), I(f"v_accvgpr_read_b32 v{O+1}, a{SHK+2*n+1}"),
              I(f"v_lshlrev_b32 v{W}, 16, v{O}"), I(f"v_and_b32 v{W+1}, 0xffff0000, v{O}"), I(f"v_lshlrev_b32 v{W+2}, 16, v{O+1}"), I(f"v_and_b32 v{W+3}, 0xffff0000, v{O+1}"), waitL(rq[-1])]
        unp = lambda e_: I(f"v_lshlrev_b32 v{KF+e_%5}, 16, v{KD+e_//2}" if e_ % 2 == 0 else f"v_and_b32 v{KF+e_%5}, 0xffff0000, v{KD+e_//2}")
        L += [unp(1), unp(2), unp(3)]
        for o in range(8):
            e_ = o + 4; d = O + o % 2
            L += [unp(e_), I(f"v_mul_f32 v{d}, v{W+3}, v{KF+(e_-3)%5}"), I(f"v_fmac_f32 v{d}, v{W+2}, v{KF+(e_-2)%5}"), I(f"v_fmac_f32 v{d}, v{W+1}, v{KF+(e_-1)%5}"),
                  I(f"v_lshlrev_b32 v{VF}, 16, v{VD+o//2}" if o % 2 == 0 else f"v_and_b32 v{VF}, 0xffff0000, v{VD+o//2}"),
                  I(f"v_fmac_f32 v{d}, v{W}, v{KF+e_%5}"), I(f"v_mul_f32 v{d}, v{d}, v{VF}")]
            if o % 2: L.append(I(f"v_cvt_pk_bf16_f32 v{11-o//2}, v{O+1}, v{O}"))
        L += [unst('SS', VF), I(f"buffer_store_dwordx4 v[8:11], v{VF}, s[44:47], {['0', 's74', 's75'][n]} offen {stflags}")]
        streams.append([[i, e, (min(b for b in bars if b >= SD[n + 1]) - 1 if (n < 2 and k < 13) else dl)] for k, i in enumerate(L)])
    hst = {}; hld = {}; hdone = {}
    for pp in range(5):
        nu = 4 if pp < 4 else 2
        st = []
        for u in range(nu):
            e = 2 * fidx[('p', pp, 17, u, 1)] + 1 + 3
            if pp < 4 and (pp < 3 or u < 2): dl = 2 * fidx[('p', pp + 1, 0, u, 0)] - 2
            elif pp == 3: dl = e + 60
            else: dl = 2 * fidx[('q', 0, 0, 0, 0)] + 40
            unit = pp * 4 + u; s = unit // 2; hh = unit % 2
            for tt in range(2):
                for r in range(4): st.append([I(f"v_mul_f32 v{HT(u,tt)+r}, v{ACC(u,0,tt)+r}, v{ACC(u,1,tt)+r}"), e, dl])
            dl2 = dl + 30 if pp < 4 else dl + 6
            for tt in range(2):
                t = HT(u, tt)
                st += [[I(f"v_cvt_pk_bf16_f32 v{t}, v{t}, v{t+1}"), e, dl2], [I(f"v_cvt_pk_bf16_f32 v{t+2}, v{t+2}, v{t+3}"), e, dl2]]
            for tt in range(2):
                t = HT(u, tt)
                st += [[I(f"v_accvgpr_write_b32 a{H(tt,s)+2*hh}, v{t}"), e, dl2], [I(f"v_accvgpr_write_b32 a{H(tt,s)+2*hh+1}, v{t+2}"), e, dl2]]
            if u % 2 == 1:
                if u == 1: st.append([I(f"s_add_u32 s68, s88, {pp*4096}"), e, dl2 + 10])
                for tt in range(2):
                    hst[(tt, s)] = I(f"buffer_store_dwordx4 a[{H(tt,s)}:{H(tt,s)+3}], v{VL}, s[44:47], s68 offen offset:{((s%2)*2+tt)*1024} sc1")
                    st.append([hst[(tt, s)], e, dl2 + 12 + 8 * tt])
        hdone[pp] = st[-1][2]
        streams.append(st)
    nl_ = I(f"buffer_load_dword v{VFV}, off, s[24:27], s97 sc1")
    streams.append([[nl_, NG[0], NG[0] + 10], [[waitV(nl_), I(f"v_readfirstlane_b32 s78, v{VFV}")], NG[1], NG[1] + 4],
                    [[I("s_cmp_eq_u32 s78, 0"), I("s_cbranch_scc1 K1_slowN"), I("K1_backN:")], NG[1] + 1, NG[1] + 6]])
    for k, (ss, pl) in enumerate([(range(0, 4), 1), (range(4, 6), 2), (range(6, 9), 4)]):
        bg = min(b for b in bars if b >= hdone[pl] + WAITG)
        post[bg].insert(0, waitV([hst[(tt, s)] for s in ss for tt in range(2)]))
        streams.append([[I(f"v_add_u32 v{VFV}, 1, v{VFV}"), bg - 20, bg], [I(f"buffer_store_dword v{VFV}, v{VFL}, s[44:47], s90 offen sc1"), bg + 1, bg + 6]])
        g0 = bg + SKEW[k]; g1 = g0 + CHK[k]
        fl = I(f"buffer_load_dword v{VFD}, off, s[44:47], s91 sc1")
        st = [[fl, g0, g0 + 6], [[waitV(fl), I(f"v_readfirstlane_b32 s69, v{VFD}")], g1, g1 + 2], [I(f"s_add_u32 s79, s78, {k+1}"), g1, g1 + 2],
              [[I("s_sub_u32 s69, s69, s79"), I(f"s_cmp_gt_u32 s69, {2-k}"), I(f"s_cbranch_scc1 K1_slow{k}"), I(f"K1_back{k}:")], g1 + 1, g1 + 3]]
        assert g1 + 3 < 1700
        for s in ss:
            if s % 2 == 0: st.append([I(f"s_add_u32 s69, s89, {(s//2)*4096}"), g1 + 1, g1 + 4 + 8 * (s - ss[0])])
            for tt in range(2):
                hld[(tt, s)] = I(f"buffer_load_dwordx4 a[{H(tt,s,1)}:{H(tt,s,1)+3}], v{VL}, s[44:47], s69 offen offset:{((s%2)*2+tt)*1024} sc1")
                st.append([hld[(tt, s)], g1 + 1, g1 + 8 + 8 * (s - ss[0]) + 4 * tt])
        streams.append(st)
    for s in range(9):
        fu = min(k for k, f in enumerate(frags) if f['key'][0] == 'q' and f['key'][2] == 1 and f['key'][3] == s)
        post[2 * fu - 1].append(waitV([hld[(0, s)], hld[(1, s)]]))
    PK = 192; prev = 0
    for cnt, (b, u) in enumerate(sorted(lastq, key=lambda x: lastq[x])):
        e = max(2 * lastq[(b, u)] + 1 + 3, min(prev + 13, NM - 10)); prev = e
        k = PK + 4 * (cnt % 8)
        a0, a1 = ACC2(b, u, 0), ACC2(b, u, 1)
        streams.append([[I(t), e, e + 20] for t in [
            f"v_cvt_pk_bf16_f32 v{k}, v{a0}, v{a0+1}", f"v_cvt_pk_bf16_f32 v{k+1}, v{a0+2}, v{a0+3}",
            f"v_cvt_pk_bf16_f32 v{k+2}, v{a1}, v{a1+1}", f"v_cvt_pk_bf16_f32 v{k+3}, v{a1+2}, v{a1+3}",
            f"s_add_u32 s{70+cnt%6}, s{58 if b < 4 else 53}, {((8*b if b < 4 else 0)+2*u)*32768}",
            f"v_permlane16_swap_b32 v{k}, v{k+2}", f"v_permlane16_swap_b32 v{k+1}, v{k+3}",
            f"buffer_store_dwordx4 v[{k}:{k+3}], v{VS}, s[44:47], s{70+cnt%6} offen {stflags}"]])
    for st in streams:
        for k in range(1, len(st)): st[k][1] = max(st[k][1], st[k - 1][1])
        for k in range(len(st) - 2, -1, -1): st[k][2] = min(st[k][2], st[k + 1][2])
        assert all(a <= b for _, a, b in st), [(x.text if not isinstance(x, list) else 'bundle', a, b) for x, a, b in st if a > b][:3]
    for mi, mg in enumerate(marks):
        post[mg] += [I(f"s_memtime s[{20+2*(mi%2)}:{21+2*(mi%2)}]"), I("s_waitcnt lgkmcnt(0)"), I(f"s_sub_u32 s{20+2*(mi%2)}, s{20+2*(mi%2)}, s4"), I(f"v_writelane_b32 v0, s{20+2*(mi%2)}, {mi}")]
    kind = lambda i: 'bundle' if isinstance(i, list) else i.kind
    big = lambda i: kind(i) in ('dma', 'perm', 'vm_st', 'vm_ld')
    cost = lambda i: 2 if (big(i) or kind(i) == 'bundle') else 1
    gaps = [[] for _ in range(NM)]
    over = 0
    reserved = set(dsched.values())
    slack = lambda s: min(it[2] - 1.5 * k for k, it in enumerate(s[:40]))
    for g in range(NM):
        used = len(reads[g]) + len(post[g])
        if g + 1 in reserved: used = max(used, 2)
        while True:
            cand = [s for s in streams if s and s[0][1] <= g]
            if not cand: break
            forced = [s for s in cand if s[0][2] <= g]
            if forced: s = min(forced, key=lambda x: x[0][2])
            else:
                def fits(s):
                    it = s[0][0]
                    if kind(it) == 'mfma': return not any(kind(x) == 'mfma' for x in gaps[g]) and g + 1 not in reserved and (used >= 2 or len(cand) == 1)
                    if big(it):
                        return (not gaps[g] and not post[g] and len(reads[g]) == 1 and g > 0 and len(reads[g-1]) + len(post[g-1]) + len(gaps[g-1]) == 1
                                and g not in reserved and g + 1 not in reserved)
                    if kind(it) == 'ds_r' and gaps[g]: return False
                    if used < 2: return True
                    return used < 3 and any(x[2] - g < (k + 1) * 1.0 - 1 for k, x in enumerate(s[:40]))
                ok = [s for s in cand if fits(s)]
                if not ok: break
                s = min(ok, key=slack)
            it = s.pop(0)[0]
            if big(it) and len(reads[g]) == 1 and g > 0 and len(reads[g-1]) + len(post[g-1]) + len(gaps[g-1]) == 1 and not gaps[g]:
                reads[g-1] += reads[g]; reads[g] = []; used -= 1
            gaps[g].append(it)
            if kind(it) == 'mfma': over += max(0, used - len(post[g]) - 2); used = len(post[g])
            else: used += cost(it)
        if used > 2: over += used - 2
    for g in range(NM):
        f = frags[g // 2]; acc, bop, z = f['mf'][g % 2]
        b = 4 * ((g // 2) % NBUF)
        p(f"{MF} v[{acc}:{acc+3}], a[{b}:{b+3}], {bop}, {'0' if z else f'v[{acc}:{acc+3}]'}")
        for i in reads[g] + gaps[g] + post[g]:
            for x in (i if isinstance(i, list) else [i]): p.add(x)
    for s in streams:
        for it in s: p.add(it[0])
    if dbg:
        p("s_memtime s[100:101]\ns_waitcnt lgkmcnt(0)\ns_sub_u32 s100, s100, s4")
        stamp_end(p, 6, 1, 14, 4, extra=64)
        p("v_mov_b32 v16, s13\nv_mov_b32 v17, s100\nv_mov_b32 v18, s63\nv_mov_b32 v19, s8\ns_add_u32 s92, s92, 0x20000\nbuffer_store_dwordx4 v[16:19], v20, s[88:91], s92 offen")
        p("s_lshl_b32 s92, s2, 2\ns_add_u32 s92, s92, s14\ns_lshl_b32 s92, s92, 8\ns_add_u32 s92, s92, 0x4100000\nv_lshlrev_b32 v20, 2, v2\nbuffer_store_dword v0, v20, s[88:91], s92 offen")
    p("K1_done:\ns_endpgm")
    seq, npad = p.finish()
    o = Prog()
    def spin(name, back, load, dst, test):
        o(f"{name}:\ns_add_u32 s63, s63, 1\ns_cmp_ge_u32 s63, 0x40000\ns_cbranch_scc1 {back}")
        o(f"s_sleep 2\n{load}\ns_waitcnt vmcnt(0)\n{dst}\ns_nop 0\n{test}\ns_cbranch_scc1 {name}\ns_branch {back}")
    spin("K1_slowN", "K1_backN", nl_.text, f"v_readfirstlane_b32 s78, v{VFV}", "s_cmp_eq_u32 s78, 0")
    for k in range(3):
        spin(f"K1_slow{k}", f"K1_back{k}", f"buffer_load_dword v{VFD}, off, s[44:47], s91 sc1", f"v_readfirstlane_b32 s69, v{VFD}", f"s_sub_u32 s69, s69, s79\ns_cmp_gt_u32 s69, {2-k}")
    o("K1_stat:\ns_nop 7\ns_cmp_eq_u32 s18, 1\ns_cbranch_scc1 K1_stat1")
    for tt in range(2):
        if tt: o("K1_stat1:")
        A_, q, T = TMP + 8, TMP + 12, TMP + 14
        for ks in range(18):
            o(f"{MF} v[{A_}:{A_+3}], v[{X(tt,ks)}:{X(tt,ks)+3}], v[{X(tt,ks)}:{X(tt,ks)+3}], {'0' if ks == 0 else f'v[{A_}:{A_+3}]'}")
        o(f"v_and_b32 v{T}, 3, v{LANE}\nv_cmp_eq_u32 vcc, 1, v{T}\nv_cndmask_b32 v{q}, v{A_}, v{A_+1}, vcc\nv_cmp_eq_u32 vcc, 2, v{T}\nv_cndmask_b32 v{q}, v{q}, v{A_+2}, vcc\nv_cmp_eq_u32 vcc, 3, v{T}\nv_cndmask_b32 v{q}, v{q}, v{A_+3}, vcc")
        o(f"v_add_f32 v{T}, v{MT[tt]}, v{NM4[tt]}\nv_mul_f32 v{T}, v{T}, v{T}\nv_mul_f32 v{q}, 0x3ae38e39, v{q}\nv_sub_f32 v{q}, v{q}, v{T}\nv_max_f32 v{q}, 0, v{q}")
        o(f"v_cvt_pk_bf16_f32 v{q}, v{q}, v{q}\nv_lshlrev_b32 v{q}, 16, v{q}\nv_add_f32 v{q}, 0x3727c5ac, v{q}")
        o(f"v_cvt_pk_bf16_f32 v{q}, v{q}, v{q}\nv_lshlrev_b32 v{q}, 16, v{q}\nv_sqrt_f32 v{q}, v{q}")
        o(f"v_cvt_pk_bf16_f32 v{q}, v{q}, v{q}\nv_lshlrev_b32 v{q}, 16, v{q}\nv_rcp_f32 v{T+1}, v{q}\nv_xor_b32 v{T}, 0x80000000, v{NM4[tt]}")
        o(f"v_accvgpr_read_b32 v{q}, a{STASH['VST']}\nbuffer_store_dwordx2 v[{T}:{T+1}], v{q}, s[44:47], 0 offen offset:{128*tt}\ns_nop 1\ns_branch K1_statback")
    seq2, _ = o.finish()
    seq = seq + seq2
    nbytes = sum(4 if (i.kind in ('wait', 'barrier', 'nop', 'branch') or (i.kind == 'salu' and not re.search(r'(0x[0-9a-f]+|\b\d{3,}\b)', i.text))) else 8 for i in seq if i.kind not in ('label', 'dir'))
    txt = render(seq).replace("K1_NLINES", str(nbytes // 128 - 16))
    stats = dict(n=len(seq), pads=npad, over=over, bytes=nbytes)
    return khead("k1_kernel") + txt, kd("k1_kernel", 256 + NAG, 256), f"; @launch kernel=k1_kernel grid=(256,1,1) block=(256,1,1) lds=163840", stats
if __name__ == "__main__":
    a, b, c, st = gen_k1()
    import sys
    print(st, file=sys.stderr)
    print(a)
```

```python
from asmfw import *
from common import *

HC1, XR, CHSZ = 4160, 8320, 12928
YB, YP = 8 * CHSZ, 2112
K2_LDS = YB + 8 * YP
SETS = [[0, 3, 4, 7], [1, 2, 5, 6]]

def conv_body(p, hf, dbg=False):
    tiles = SETS[hf]; mx = max(tiles)
    ACC, A, B = 0, 0, 0
    ACC = 16; A = 32; B = 64
    AB = [8, 9, 10, 11]; BB = 12; KB = 13; YA = 14
    def rdA(i, rho):
        o = 128 * (i & 1) + 16 * rho; r = A + 4 * i
        a = p(f"ds_read2_b32 v[{r}:{r+1}], v{AB[i>>1]} offset0:{o} offset1:{o+1}")
        b = p(f"ds_read2_b32 v[{r+2}:{r+3}], v{AB[i>>1]} offset0:{o+2} offset1:{o+3}")
        return b
    def rdB(j, rho):
        u = 8 * j - rho; r = B + 4 * j
        return p(f"ds_read_b128 v[{r}:{r+3}], v{BB} offset:{3584 - 64*u}")
    opA, opB = {}, {}
    for i in range(mx + 1):
        opA[i] = rdA(i, 0); opB[mx - i] = rdB(mx - i, 0)
    first = set()
    for rho in range(8):
        for i in range(mx + 1):
            js = sorted([n - i for n in tiles if n - i >= 0], reverse=True)
            for j in js:
                n = i + j; t = tiles.index(n); acc = ACC + 4 * t
                p.wl([opA[i], opB[j]])
                c = f"v[{acc}:{acc+3}]" if t in first else "0"
                first.add(t)
                p(f"v_mfma_f32_16x16x32_bf16 v[{acc}:{acc+3}], v[{A+4*i}:{A+4*i+3}], v[{B+4*j}:{B+4*j+3}], {c}")
            if rho < 7:
                opA[i] = rdA(i, rho + 1); opB[mx - i] = rdB(mx - i, rho + 1)
    kv = [p(f"ds_read_b64 v[{32+2*t}:{33+2*t}], v{KB} offset:{3584 - 512*n}") for t, n in enumerate(tiles)]
    for t, n in enumerate(tiles):
        p.wl(kv[t]); a = ACC + 4 * t; k = 32 + 2 * t
        p(f"v_and_b32 v44, 0xffff0000, v{k+1}\nv_lshlrev_b32 v45, 16, v{k+1}\nv_and_b32 v46, 0xffff0000, v{k}\nv_lshlrev_b32 v47, 16, v{k}")
        for r in range(4): p(f"v_fmac_f32 v{a+r}, v{44+r}, v15")
        p(f"v_cvt_pk_bf16_f32 v{48+2*t}, v{a}, v{a+1}\nv_cvt_pk_bf16_f32 v{49+2*t}, v{a+2}, v{a+3}")
        p(f"ds_write_b64 v{YA}, v[{48+2*t}:{49+2*t}] offset:{512*t}")
    p("s_waitcnt lgkmcnt(0)")
    if dbg: stamp_end(p, 12, 2, 28, 16, extra=94)
    p("s_barrier\ns_endpgm")

def gen_k2(nsplit=8, rflags="", dbg=False, usedot=False, oflags="", xfirst=True):
    out = khead("k2_kernel")
    p = Prog()
    p("s_cmp_ge_u32 s2, 144\ns_cbranch_scc1 K2_done")
    p(f"s_load_dwordx2 s[4:5], s[0:1], {KA_Q}")
    p(f"s_load_dwordx4 s[8:11], s[0:1], {KA_SSMK}")
    p(f"s_load_dwordx2 s[6:7], s[0:1], {KA_OUT}")
    p(f"s_load_dwordx2 s[12:13], s[0:1], {KA_WS}")
    if dbg: stamp_begin(p)
    p("v_lshrrev_b32 v1, 6, v0\nv_and_b32 v2, 63, v0")
    p("v_readfirstlane_b32 s28, v1")
    p("s_and_b32 s29, s2, 7\ns_lshr_b32 s30, s2, 3\ns_mul_i32 s29, s29, 9\ns_lshr_b32 s31, s30, 1\ns_add_u32 s29, s29, s31\ns_and_b32 s30, s30, 1")
    p("v_lshlrev_b32 v3, 4, v2")
    p("v_lshrrev_b32 v4, 4, v2\nv_and_b32 v5, 15, v2")
    p("s_cmp_ge_u32 s28, 8\ns_waitcnt lgkmcnt(0)\ns_cbranch_scc1 K2_red")
    srd(p, 16, 8, NX); srd(p, 20, 12, NX, WS_KVT); srd(p, 24, 10, D * 2)
    p("s_lshl_b32 s32, s29, 3\ns_add_u32 s32, s32, s28")
    p(f"s_lshl_b32 s33, s32, 12\ns_mul_i32 s34, s28, {CHSZ}")
    p(f"s_add_u32 m0, s34, {XR}")
    hl = []
    for z in range(4):
        p(f"buffer_load_dwordx4 v[{32+8*z}:{35+8*z}], v3, s[16:19], s33 offen offset:{1024*z}")
        hl.append(p(f"buffer_load_dword v{36+8*z}, v3, s[16:19], s33 offen offset:{1024*z+16}"))
    xd = [p(f"buffer_load_dwordx4 v3, s[20:23], s33 offen offset:{1024*z} lds") for z in range(4)]
    p("s_lshl_b32 s35, s32, 1\nv_mov_b32 v6, s35")
    dl = p("buffer_load_ushort v15, v6, s[24:27], 0 offen")
    p(f"v_and_b32 v6, 1, v5\nv_cmp_eq_u32 vcc, 1, v6\nv_mov_b32 v7, {HC1}\nv_cndmask_b32 v7, v7, 2, vcc")
    p("v_lshl_add_u32 v7, v5, 1, v7\nv_lshl_add_u32 v7, v4, 4, v7\nv_add_u32 v8, s34, v7")
    p("v_add_u32 v9, 1024, v8\nv_add_u32 v10, 2048, v8\nv_add_u32 v11, 3072, v8")
    p(f"s_add_u32 s36, s34, {XR+480}\nv_lshlrev_b32 v6, 5, v5\nv_sub_u32 v12, s36, v6\nv_lshl_add_u32 v12, v4, 4, v12")
    p(f"s_add_u32 s36, s34, {XR+504}\nv_sub_u32 v13, s36, v6\nv_lshlrev_b32 v7, 3, v4\nv_sub_u32 v13, v13, v7")
    p(f"s_mul_i32 s36, s28, {YP}\ns_add_u32 s36, s36, {YB}\nv_add_u32 v14, s36, v6\nv_add_u32 v14, v14, v7")
    p("v_mov_b32 v64, 0\nv_mov_b32 v65, 0\nv_mov_b32 v66, 0")
    p(f"v_lshlrev_b32 v6, 3, v2\nv_add_u32 v6, s34, v6\nds_write_b64 v6, v[64:65] offset:{XR+4096}")
    p("v_add_u32 v67, s34, v3")
    p.wv(hl[0])
    p("v_readfirstlane_b32 s37, v32\ns_lshl_b32 s37, s37, 16\nv_writelane_b32 v66, s37, 7")
    p("v_lshlrev_b32 v6, 2, v2\nv_add_u32 v6, s34, v6\ns_mov_b64 exec, 0xff")
    p(f"ds_write_b32 v6, v64\nds_write_b32 v6, v66 offset:{HC1}\ns_mov_b64 exec, -1")
    for z in range(4):
        p.wv(hl[z]); r = 32 + 8 * z
        p(f"ds_write_b128 v67, v[{r}:{r+3}] offset:{32+1024*z}")
        for e in range(4): p(f"v_alignbyte_b32 v{68+4*z+e}, v{r+e+1}, v{r+e}, 2")
        p(f"ds_write_b128 v67, v[{68+4*z}:{71+4*z}] offset:{HC1+32+1024*z}")
    p("s_waitcnt vmcnt(0) lgkmcnt(0)")
    p("v_lshlrev_b32 v15, 16, v15")
    if dbg: p("s_memrealtime s[94:95]\ns_waitcnt lgkmcnt(0)")
    p("s_cmp_eq_u32 s30, 1\ns_cbranch_scc1 K2_conv1")
    seq, _ = p.finish(); out += render(seq)
    p = Prog(); conv_body(p, 0, dbg); seq, _ = p.finish(); out += render(seq)
    p = Prog(); p("K2_conv1:"); conv_body(p, 1, dbg); seq, _ = p.finish(); out += render(seq)
    p = Prog()
    p("K2_red:")
    srd(p, 16, 12, PART_BYTES, WS_PART); srd(p, 20, 4, NX); srd(p, 24, 12, S * 8, WS_STATS); srd(p, 40, 6, NX)
    p("s_sub_u32 s28, s28, 8")
    p("s_mov_b32 s32, 0x7430\ns_cmp_eq_u32 s30, 1\ns_cselect_b32 s32, 0x6521, s32\ns_lshr_b32 s33, s28, 1\ns_lshl_b32 s33, s33, 2\ns_lshr_b32 s32, s32, s33\ns_and_b32 s32, s32, 15")
    p("s_lshl_b32 s32, s32, 8\ns_and_b32 s33, s28, 1\ns_lshl_b32 s33, s33, 7\ns_add_u32 s32, s32, s33")
    p("s_lshl_b32 s33, s29, 15\ns_lshl_b32 s34, s32, 4\ns_add_u32 s33, s33, s34\ns_mov_b32 s44, s33")
    PB = 32
    def pl(j, z, sreg): return p(f"buffer_load_dwordx4 v[{PB+4*j}:{PB+4*j+3}], v3, s[16:19], s{sreg} offen offset:{1024*z} {rflags}")
    ld = {}; buf = {}
    def xloads():
        p(f"s_mul_i32 s35, s32, {ROWB}\ns_lshl_b32 s36, s29, 4\ns_add_u32 s35, s35, s36\ns_add_u32 s36, s35, {64*ROWB}")
        p(f"v_mul_u32_u24 v6, {ROWB}, v2")
        xl = [p(f"buffer_load_dwordx4 v[{96+4*z}:{99+4*z}], v6, s[20:23], s{35+z} offen") for z in range(2)]
        p("v_lshlrev_b32 v7, 3, v2\ns_lshl_b32 s37, s32, 3")
        return [p(f"buffer_load_dwordx2 v[{104+2*z}:{105+2*z}], v7, s[24:27], s37 offen offset:{512*z}") for z in range(2)]
    for j in range(nsplit):
        buf[(j, 0)] = j; ld[(j, 0)] = pl(j, 0, 33)
        p(f"s_add_u32 s33, s33, {72*32768}")
    if xfirst: sl = xloads()
    for j in range(16 - nsplit):
        buf[(j, 1)] = nsplit + j; ld[(j, 1)] = pl(nsplit + j, 1, 44)
        p(f"s_add_u32 s44, s44, {72*32768}")
    later = range(16 - nsplit, nsplit)
    if not xfirst: sl = xloads()
    p(f"v_lshrrev_b32 v8, 2, v5\nv_and_b32 v9, 3, v5\nv_mul_u32_u24 v8, {YP}, v8\nv_lshl_add_u32 v8, v9, 3, v8\nv_lshl_add_u32 v8, v4, 5, v8")
    p(f"s_lshl_b32 s38, s28, 8\ns_add_u32 s38, s38, {YB}\nv_add_u32 v8, s38, v8")
    p("s_mov_b32 s46, 0x00003f80\ns_mov_b32 s47, 0x3f800000\ns_mov_b32 s48, 0xbfb8aa3b")
    O = [16, 24]
    def accum(j, z):
        p.wv(ld[(j, z)])
        for e in range(4):
            src = PB + 4 * buf[(j, z)] + e
            if usedot:
                for hi in range(2):
                    c = "0" if j == 0 else f"v{O[z]+2*e+hi}"
                    p(f"v_dot2_f32_bf16 v{O[z]+2*e+hi}, v{src}, s{46+hi}, {c}")
            elif j == 0:
                p(f"v_lshlrev_b32 v{O[z]+2*e}, 16, v{src}\nv_and_b32 v{O[z]+2*e+1}, 0xffff0000, v{src}")
            else:
                p(f"v_lshlrev_b32 v14, 16, v{src}\nv_and_b32 v15, 0xffff0000, v{src}")
                p(f"v_add_f32 v{O[z]+2*e}, v{O[z]+2*e}, v14\nv_add_f32 v{O[z]+2*e+1}, v{O[z]+2*e+1}, v15")
    SS = [108, 116]
    def xpart(z):
        m, r = 104 + 2 * z, 105 + 2 * z
        for e in range(4):
            x = 96 + 4 * z + e; s0 = SS[z] + 2 * e
            p(f"v_lshlrev_b32 v{s0}, 16, v{x}\nv_and_b32 v{s0+1}, 0xffff0000, v{x}")
            p(f"v_sub_f32 v{s0}, v{s0}, v{m}\nv_sub_f32 v{s0+1}, v{s0+1}, v{m}\nv_cvt_pk_bf16_f32 v14, v{s0}, v{s0+1}")
            p(f"v_lshlrev_b32 v{s0}, 16, v14\nv_and_b32 v{s0+1}, 0xffff0000, v14")
            p(f"v_mul_f32 v{s0}, v{s0}, v{r}\nv_mul_f32 v{s0+1}, v{s0+1}, v{r}\nv_cvt_pk_bf16_f32 v14, v{s0}, v{s0+1}")
            p(f"v_lshlrev_b32 v{s0}, 16, v14\nv_and_b32 v{s0+1}, 0xffff0000, v14")
    def gpart(z):
        r = 105 + 2 * z
        p(f"v_mul_f32 v124, v{r}, v{r}\nv_mul_f32 v125, s48, v124")
        T = 10
        for h in range(2):
            for k in range(4): p(f"v_mul_f32 v{T+k}, v{O[z]+4*h+k}, v125")
            for k in range(4): p(f"v_exp_f32 v{T+k}, v{T+k}")
            for k in range(4): p(f"v_mul_f32 v{O[z]+4*h+k}, v{O[z]+4*h+k}, v124")
            for k in range(4): p(f"v_add_f32 v{T+k}, 1.0, v{T+k}")
            for k in range(4): p(f"v_rcp_f32 v{T+k}, v{T+k}")
            for k in range(4): p(f"v_mul_f32 v{O[z]+4*h+k}, v{O[z]+4*h+k}, v{SS[z]+4*h+k}")
            for k in range(4): p(f"v_mul_f32 v{O[z]+4*h+k}, v{O[z]+4*h+k}, v{T+k}")
            for k in range(4):
                x = 96 + 4 * z + 2 * h + k // 2
                p(f"v_lshlrev_b32 v{SS[z]+4*h+k}, 16, v{x}" if k % 2 == 0 else f"v_and_b32 v{SS[z]+4*h+k}, 0xffff0000, v{x}")
    nxt = list(later)
    for j in range(nsplit):
        accum(j, 0)
        if nxt:
            jj = nxt.pop(0); buf[(jj, 1)] = buf[(j, 0)]
            ld[(jj, 1)] = pl(buf[(jj, 1)], 1, 44)
            p(f"s_add_u32 s44, s44, {72*32768}")
    p.wv(sl[1])
    xpart(0); gpart(0); xpart(1)
    for j in range(nsplit): accum(j, 1)
    gpart(1)
    if dbg: p("s_memrealtime s[94:95]\ns_waitcnt lgkmcnt(0)")
    p("s_barrier")
    y = {(z, b): p(f"ds_read_b64_tr_b16 v[{32+4*z+2*b}:{33+4*z+2*b}], v8 offset:{4*YP*b + 128*z}") for z in range(2) for b in range(2)}
    for z in range(2):
        for e in range(4):
            if e % 2 == 0: p.wl(y[(z, e // 2)])
            s0 = SS[z] + 2 * e
            p(f"v_lshlrev_b32 v14, 16, v{32+4*z+e}\nv_and_b32 v15, 0xffff0000, v{32+4*z+e}")
            p(f"v_fmac_f32 v{s0}, v{O[z]+2*e}, v14\nv_fmac_f32 v{s0+1}, v{O[z]+2*e+1}, v15\nv_cvt_pk_bf16_f32 v{96+4*z+e}, v{s0}, v{s0+1}")
        p(f"buffer_store_dwordx4 v[{96+4*z}:{99+4*z}], v6, s[40:43], s{35+z} offen {oflags}")
    if dbg:
        p("s_add_u32 s28, s28, 8"); stamp_end(p, 12, 2, 28, 16, extra=94)
    p("K2_done:\ns_endpgm")
    seq, _ = p.finish(); out += render(seq)
    return out, kd("k2_kernel", 128, 128), f"; @launch kernel=k2_kernel grid=(144,1,1) block=(1024,1,1) lds={K2_LDS}"
if __name__ == "__main__":
    print(gen_k2()[0])
```

```python
from build import build
from asmfw import *
from common import *
def probe2(path, a, b, mode, mult=8, k1kw={}, k2kw={}, n=256, stride=64, div=1):
    build(path, k1kw, k2kw, dbg=True)
    t = open(path).read()
    p = Prog()
    p("s_cmp_ge_u32 s2, 1\ns_cbranch_scc1 K3_done")
    p(f"s_load_dwordx2 s[4:5], s[0:1], {KA_WS}\ns_waitcnt lgkmcnt(0)")
    p(f"s_add_u32 s4, s4, 0x4000000\ns_addc_u32 s5, s5, 0\ns_mov_b32 s6, 0x1000000\ns_mov_b32 s7, 0x20000")
    p(f"v_mul_u32_u24 v1, {stride}, v0\ns_mov_b32 s12, {a}\ns_mov_b32 s13, {b}")
    p("buffer_load_dword v2, v1, s[4:7], s12 offen\nbuffer_load_dword v3, v1, s[4:7], s13 offen\ns_waitcnt vmcnt(0)")
    p("v_lshlrev_b32 v4, 3, v0\nds_write_b64 v4, v[2:3]\ns_waitcnt lgkmcnt(0)\ns_barrier")
    p("v_readfirstlane_b32 s14, v0\ns_cmp_lg_u32 s14, 0\ns_cbranch_scc1 K3_done")
    p(f"v_mov_b32 v5, 0\nv_mov_b32 v6, -1\nv_mov_b32 v7, 0\nv_mov_b32 v8, 0\nv_mov_b32 v9, 0\ns_mov_b32 s15, {n}")
    p("K3_l2:\nds_read_b64 v[2:3], v8\ns_waitcnt lgkmcnt(0)\nv_min_u32 v6, v6, v2\nv_max_u32 v7, v7, v3\nv_sub_u32 v4, v3, v2\nv_add_u32 v5, v5, v4\nv_max_u32 v9, v9, v4\nv_add_u32 v8, 8, v8")
    p("s_sub_u32 s15, s15, 1\ns_cmp_lg_u32 s15, 0\ns_cbranch_scc1 K3_l2")
    if mode == "span": p("v_sub_u32 v5, v7, v6")
    elif mode == "mean": p(f"v_cvt_f32_u32 v5, v5\nv_mul_f32 v5, {1.0/n/div!r}, v5\nv_cvt_u32_f32 v5, v5")
    elif mode == "max": p(f"v_cvt_f32_u32 v5, v9\nv_mul_f32 v5, {1.0/div!r}, v5\nv_cvt_u32_f32 v5, v5")
    p(f"s_nop 1\nv_readfirstlane_b32 s6, v5\ns_memrealtime s[8:9]\ns_waitcnt lgkmcnt(0)\ns_mul_i32 s6, s6, {mult}\ns_min_u32 s6, s6, 50000")
    p("K3_loop:\ns_memrealtime s[10:11]\ns_waitcnt lgkmcnt(0)\ns_sub_u32 s10, s10, s8\ns_cmp_lt_u32 s10, s6\ns_cbranch_scc1 K3_loop")
    p("K3_done:\ns_endpgm")
    i = t.index(".amdgcn_target")
    t = t[:i] + "; @launch kernel=k3_kernel grid=(1,1,1) block=(256,1,1) lds=4096\n" + t[i:]
    i = t.index('.section .rodata')
    t = t[:i] + khead("k3_kernel") + render(p.seq) + t[i:] + kd("k3_kernel", 16, 16)
    open(path, "w").write(t)
if __name__ == "__main__":
    K1 = 0x10000; E = 0x30000
    probe2("p0.s", K1, K1 + 8, "span", mult=0)
    probe2("p1.s", K1, K1 + 8, "span")
    probe2("p2.s", K1, K1 + 12, "mean")
    probe2("p3.s", K1 + 12, K1 + 4, "mean")
    probe2("p4.s", K1 + 12, K1 + 4, "max")
    probe2("p5.s", E + 8, E + 4, "mean", div=10)
```

```python
NAME = "recurrent_scan__ssm_conv_h3__glu_gated_bilinear__prompt"
S, D, F = 2048, 576, 4608
ROWB = D * 2
WROWB = F * 2
NX = S * D * 2
NW = D * F * 2
WS_KVT = 0
WS_STATS = 0x240000
WS_PART = 0x280000
PART_BYTES = 16 * 72 * 2048 * 16
WS_HX = 0x2800000
HX_BYTES = 256 * 4 * 18432
WS_FLAG = 0x3c00000
WS_DF = 0x250000
WS_KF = 0x251000
WS_XB = 0x280000
WS_AR = 0x600000
AR_P = 2 * 73728
AR_F = AR_P + 147456
AR_X = AR_F + 256
AR_SZ = AR_X + 18432
KA_Q, KA_K, KA_V, KA_SHK, KA_SSMK, KA_SSMD, KA_BX, KA_WG, KA_WU, KA_WD, KA_OUT, KA_DBG, KA_WS = [8 * i for i in range(13)]

def srd(p, d, b, nbytes, add=0):
    if add == 0:
        p(f"s_mov_b32 s{d}, s{b}\ns_mov_b32 s{d+1}, s{b+1}")
    elif add > 0:
        p(f"s_add_u32 s{d}, s{b}, {add}\ns_addc_u32 s{d+1}, s{b+1}, 0")
    else:
        p(f"s_sub_u32 s{d}, s{b}, {-add}\ns_subb_u32 s{d+1}, s{b+1}, 0")
    p(f"s_mov_b32 s{d+2}, {nbytes}\ns_mov_b32 s{d+3}, 0x20000")

def stamp_begin(p):
    p("s_memrealtime s[98:99]")
def stamp_end(p, wsreg, slot, wavereg, nwaves, extra=None):
    p("s_memrealtime s[84:85]\ns_waitcnt vmcnt(0) lgkmcnt(0)\ns_memrealtime s[86:87]\ns_waitcnt lgkmcnt(0)")
    p(f"s_mov_b32 s88, s{wsreg}\ns_mov_b32 s89, s{wsreg+1}\ns_mov_b32 s90, 0x10000000\ns_mov_b32 s91, 0x20000")
    p(f"v_mov_b32 v16, s13\nv_mov_b32 v17, s84\nv_mov_b32 v18, s86\nv_mov_b32 v19, s{extra if extra else 84}")
    p(f"s_mul_i32 s92, s2, {nwaves*16}\ns_lshl_b32 s93, s{wavereg}, 4\ns_add_u32 s92, s92, s93\ns_add_u32 s92, s92, {0x4000000 + slot*0x10000}\nv_mov_b32 v20, 0")
    p("buffer_store_dwordx4 v[16:19], v20, s[88:91], s92 offen")
```

```python
from asmfw import *
from common import *

def X(tt, ks): return 16 + (tt * 18 + ks) * 4
def ACC(u, mat, tt): return 160 + ((u * 2 + mat) * 2 + tt) * 4
def ACC2(b, u, tt): return 16 + ((b * 4 + u) * 2 + tt) * 4
NBUF = 12
def H(tt, s, par=0): return 4 * NBUF + (tt * 9 + s) * 4 + (76 if par else 0)
TMP = 224
def HT(u, tt): return TMP + 8 * (u % 2) + 4 * tt
RA = 240
V1A, V1B = 252, 253
VPF = VHV = 254
VT_ = V2V = 255
VFL, LANE, VL, VFD, VFV = 1, 2, 3, 4, 5
MT = [6, 7]; VH2, VS = 6, 7
NM4 = [8, 12]; RAH3 = [8, 10, 12]
DUM = 120
SEL = [196, 200]
STASH = {k: 204 + n for n, k in enumerate(['VHV', 'V2V', 'VH2', 'VS', 'RAH0', 'RAH1', 'VPD', 'VK', 'SA', 'SS', 'VKF', 'VST'])}
STASH.update({k: 234 + n for n, k in enumerate(['XL', 'XS', 'AB', 'BB', 'KB', 'YA', 'YR', 'FA', 'XO', 'SA0'])})
XC = 222
SHK = 216
NAG = 222
KROW = 32 * WROWB
MF = "v_mfma_f32_16x16x32_bf16"
OOB = "0x40000000"
NPOS = 9; C = 36; WINS = [0, 3, 6]
XB = 32768
SIDE = NPOS * 16384

def gen_k1(merge=1, stop=0, rm=(), fin_kw={}, KVP=(1350, 1480), HG=(1400, 16), KG=(1500, 24), XG=(120, 470), CPG=0, XKEEP=2, XLAST=5, ROT=0, F0G=1880, useXC=1, wbl=0, hsf='sc1', NP1=6, NB1=2, HSG=40, PSG=20, XSG=30, XCUT=(0.5, 0.7, 0.9), SSG=0, oflags='', LA=7, WE=4, PB=64, amap=16, stflags="sc1", wflags="", dbg=False, xflags='', earlybars=(21,), GU=4, XFL=3,
           kvflags='', WAITG=(90, 90, 50), SKEW=(100, 100, 60), CHK=(130, 130, 70), marks=(), PFG=(60, 200, 580, 60), PL=18, PLD=42, PF1=1, HLG=50, NPRO=8, CAH=6, tlb=1, SNAP=0, ssmpf=0, TLBG=(200, 296, 320, 400), NG=(190, 400), SD=(230, 410, 700), SC=(350, 660, 930)):
    p = Prog()
    def stash(k, v): p(f"v_accvgpr_write_b32 a{STASH[k]}, v{v}")
    def unst(k, v): return I(f"v_accvgpr_read_b32 v{v}, a{STASH[k]}")
    p("s_cmp_ge_u32 s2, 256\ns_cbranch_scc1 K1_done")
    p(f"s_load_dwordx2 s[4:5], s[0:1], {KA_Q}\ns_load_dwordx4 s[8:11], s[0:1], {KA_WG}\ns_load_dwordx2 s[12:13], s[0:1], {KA_WD}")
    p(f"s_load_dwordx2 s[6:7], s[0:1], {KA_WS}\ns_load_dwordx2 s[78:79], s[0:1], {KA_DBG}\ns_load_dwordx2 s[80:81], s[0:1], {KA_SSMK}")
    p(f"s_load_dwordx4 s[68:71], s[0:1], {KA_K}\ns_load_dwordx2 s[72:73], s[0:1], {KA_SHK}\ns_load_dwordx2 s[82:83], s[0:1], {KA_SSMD}\ns_load_dwordx2 s[98:99], s[0:1], {KA_OUT}")
    p("s_memrealtime s[94:95]")
    p("s_getpc_b64 s[64:65]\ns_lshr_b32 s16, s2, 3\ns_and_b32 s20, s16, 3\ns_mul_i32 s20, s20, 192")
    p("v_add_u32 v5, s20, v0\nv_cmp_gt_u32 vcc, 64, v0\nv_lshrrev_b32 v1, 6, v0\nv_and_b32 v2, 63, v0\nv_cndmask_b32 v5, v5, v0, vcc\nv_min_u32 v5, K1_NLINES, v5\nv_lshlrev_b32 v5, 7, v5")
    p(f"global_load_dword a{DUM}, v5, s[64:65]", tag='dummy')
    p("v_readfirstlane_b32 s14, v1\ns_and_b32 s15, s2, 7")
    if amap == 16:
        p("s_lshr_b32 s17, s16, 1\ns_and_b32 s18, s16, 1\ns_lshl_b32 s19, s15, 1\ns_add_u32 s18, s18, s19")
    elif amap == 8:
        p("s_and_b32 s17, s15, 1\ns_lshl_b32 s17, s17, 3\ns_lshr_b32 s19, s16, 2\ns_add_u32 s17, s17, s19")
        p("s_lshr_b32 s18, s15, 1\ns_lshl_b32 s18, s18, 2\ns_and_b32 s19, s16, 3\ns_add_u32 s18, s18, s19")
    p("s_lshl_b32 s19, s17, 7\ns_lshl_b32 s20, s14, 5\ns_add_u32 s19, s19, s20")
    p("v_and_b32 v3, 15, v2\nv_lshrrev_b32 v1, 4, v2")
    XV = 188; SHA = 184
    p(f"v_lshrrev_b32 v4, 3, v2\nv_mul_u32_u24 v4, {ROWB}, v4\nv_and_b32 v5, 7, v2\nv_xor_b32 v5, v5, v1\nv_lshl_add_u32 v{XV}, v5, 4, v4\nv_xor_b32 v5, 64, v{XV}")
    p(f"v_add_u32 v{XV+1}, {8*ROWB-1024}, v5\nv_add_u32 v{XV+2}, {16*ROWB-2048}, v{XV}\nv_add_u32 v{XV+3}, {24*ROWB-3072}, v5")
    p(f"s_mul_i32 s21, s19, {ROWB}\ns_lshl_b32 s22, s14, 15\ns_add_u32 s22, s22, {XB}")
    assert ROT == 0
    p("s_waitcnt lgkmcnt(0)")
    srd(p, 24, 4, NX)
    if dbg: p("s_mov_b32 s3, s94")
    xd = {}; xr = {}
    def xdma(k):
        tt, cb = divmod(k, 9)
        if k >= 16: p.wl(xr[(0, 2 * (k - 16) + 1)])
        p(f"s_add_u32 m0, s22, {(k % 16)*2048 - 2048*tt}\ns_add_u32 s20x, s21, {128*cb}".replace("s20x", "s101"))
        for rg in (2 * tt, 2 * tt + 1):
            xd[(cb, rg)] = p(f"buffer_load_dwordx4 v{XV + rg}, s[24:27], s101 offen offset:{1024*rg} {xflags} lds")
    xq = list(range(16))
    for _ in range(2 * XFL): xdma(xq.pop(0))
    setup0 = len(p.seq)
    p("s_lshl_b32 s94, s94, 3\ns_or_b32 s94, s94, 4\nv_mov_b32 v6, s94\ns_lshl_b32 s20, s17, 4\ns_add_u32 s91, s20, s18\ns_or_b32 s20, s91, s14")
    p("s_cmp_eq_u32 s20, 0\ns_cselect_b32 s20, 0, 0x1000\ns_mov_b32 s92, s78\ns_mov_b32 s93, s79\ns_mov_b32 s94, 256\ns_mov_b32 s95, 0x20000")
    p("buffer_store_dword v6, off, s[92:95], s20 sc1")
    srd(p, 28, 8, NW); srd(p, 32, 10, NW + 1024, -1024); srd(p, 36, 12, NW + 3072, -3072)
    p("s_cmp_ge_u32 s14, 2\ns_cselect_b32 s20, s10, s8\ns_cselect_b32 s23, s11, s9")
    p(f"s_sub_u32 s40, s20, 3072\ns_subb_u32 s41, s23, 0\ns_mov_b32 s42, {NW+3072}\ns_mov_b32 s43, 0x20000")
    srd(p, 44, 6, 0x10000000); srd(p, 48, 68, NX); srd(p, 84, 70, NX + 1024, -1024)
    p("s_mov_b32 s8, s82\ns_mov_b32 s9, s83")
    if dbg: p("s_mov_b32 s13, s3")
    p(f"s_mov_b32 s82, {NX}\ns_mov_b32 s83, 0x20000\ns_mov_b32 s63, 0\ns_lshl_b32 s52, s14, 12")
    p("s_and_b32 s20, s18, 1\ns_mul_i32 s53, s18, 576\ns_lshl_b32 s23, s20, 6\ns_add_u32 s54, s53, s23")
    p("s_cmp_eq_u32 s20, 1\ns_cselect_b32 s23, 0, 512\ns_add_u32 s55, s53, s23")
    p("s_mul_i32 s23, s20, 640\ns_lshl_b32 s66, s20, 6\ns_add_u32 s66, s66, 512")
    p(f"s_mul_i32 s56, s54, {ROWB//2}\ns_mul_i32 s57, s55, {ROWB//2}")
    p(f"s_xor_b32 s76, s18, 1\ns_mul_i32 s76, s76, {288*ROWB}\ns_cmp_eq_u32 s20, 0\ns_cselect_b32 s77, 0, {256*ROWB}\ns_add_u32 s77, s77, s76")
    p(f"s_cmp_eq_u32 s20, 0\ns_cselect_b32 s59, {32*ROWB}, 0\ns_add_u32 s76, s76, s59")
    p(f"s_add_u32 s61, s56, s66\ns_add_u32 s60, s76, s66\ns_sub_u32 s59, s77, {32*ROWB}\ns_cmp_ge_u32 s14, 2\ns_cselect_b32 s59, s59, s57\ns_add_u32 s59, s59, s66")
    p("s_add_u32 s56, s56, s23\ns_add_u32 s57, s57, s23\ns_add_u32 s76, s76, s23\ns_add_u32 s77, s77, s23")
    p(f"s_lshr_b32 s58, s18, 1\ns_lshl_b32 s58, s58, 4\ns_add_u32 s58, s58, s17\ns_mul_i32 s58, s58, {AR_SZ}\ns_add_u32 s58, s58, {WS_AR}")
    p(f"s_mul_i32 s88, s14, 18432\ns_add_u32 s88, s88, s58\ns_mul_i32 s89, s20, 73728\ns_sub_u32 s91, 73728, s89\ns_add_u32 s62, s88, s91\ns_add_u32 s88, s88, s89\ns_mov_b32 s89, s62")
    p(f"s_lshl_b32 s90, s20, 7\ns_xor_b32 s91, s90, 128\ns_add_u32 s62, s58, {AR_F}\ns_add_u32 s90, s90, s62\ns_add_u32 s91, s91, s62")
    p(f"s_cmp_eq_u32 s14, 0\ns_cselect_b32 s90, s90, {OOB}")
    p(f"s_lshl_b32 s62, s14, 9\ns_add_u32 s58, s58, s62\ns_add_u32 s58, s58, {AR_P}")
    p("s_lshl_b32 s66, s66, 7\ns_add_u32 s53, s58, s66\ns_lshl_b32 s23, s23, 7\ns_add_u32 s58, s58, s23")
    p(f"s_lshl_b32 s96, s14, 11\ns_add_u32 s96, s96, {SIDE}\ns_lshl_b32 s71, s14, 3\ns_sub_u32 s71, 28, s71\ns_mul_i32 s71, s71, {ROWB}")
    p(f"s_and_b32 s20, s2, 3\ns_cmp_eq_u32 s20, 0\ns_cselect_b32 s75, {512*4096}, {OOB}\ns_cselect_b32 s10, 1024, {OOB}\ns_mov_b32 s74, {64*4096}\ns_lshl_b32 s70, s20, 8")
    share = amap; rows = D // share // 2; nld = -(-2592 // (share * 4 * PLD)) * PLD; assert rows % PL == 0
    p("v_lshrrev_b32 v5, 3, v2\ns_lshl_b32 s20, s14, 3\nv_add_u32 v5, s20, v5")
    p(f"v_and_b32 v6, 7, v2\nv_lshlrev_b32 v7, 1, v1\nv_xor_b32 v7, v7, v6\nv_lshlrev_b32 v7, 4, v7")
    p(f"v_mul_u32_u24 v{V1A}, {WROWB}, v5\nv_add_u32 v{V1A}, v{V1A}, v7\nv_add_u32 v{V1B}, {KROW-2048}, v{V1A}")
    p(f"v_mul_u32_u24 v5, {ROWB}, v5\nv_add_u32 v5, v5, v7"); stash('V2V', 5)
    p(f"s_and_b32 s20, s17, {share-1}\ns_lshl_b32 s20, s20, 1\ns_and_b32 s23, s14, 1\ns_add_u32 s20, s20, s23\ns_mul_i32 s20, s20, {rows}")
    p(f"v_min_u32 v{VPF}, {PL-1}, v2\nv_add_u32 v{VPF}, s20, v{VPF}\nv_mul_u32_u24 v{VPF}, {WROWB}, v{VPF}")
    p(f"v_min_u32 v4, {rows-1}, v2\nv_add_u32 v4, s20, v4\nv_mul_u32_u24 v4, {WROWB}, v4")
    p(f"s_and_b32 s20, s17, {share-1}\ns_lshl_b32 s20, s20, 2\ns_add_u32 s20, s20, s14\ns_mul_i32 s20, s20, {nld}")
    p(f"v_min_u32 v5, {PLD-1}, v2\nv_add_u32 v5, s20, v5\nv_lshlrev_b32 v5, 7, v5"); stash('VPD', 5)
    p(f"s_mul_i32 s20, s16, 43\ns_lshr_b32 s20, s20, 7\ns_mul_i32 s12, s20, 3\ns_sub_u32 s12, s16, s12\ns_mul_i32 s11, s15, 9\ns_add_u32 s11, s11, s20")
    p(f"s_lshl_b32 s97, s11, 3\ns_lshl_b32 s20, s14, 1\ns_add_u32 s97, s97, s20\ns_lshl_b32 s97, s97, 12")
    p(f"s_cmp_lt_u32 s16, 27\ns_cselect_b32 s97, s97, {OOB}")
    p(f"s_lshr_b32 s20, s11, 4\ns_and_b32 s20, s20, 3\ns_lshl_b32 s20, s20, 8\ns_add_u32 s20, s20, {WS_KF}\nv_lshl_add_u32 v5, v2, 2, s20"); stash('VKF', 5)
    p("v_and_b32 v8, 1, v1\nv_and_b32 v6, 3, v2\nv_lshlrev_b32 v7, 1, v8\nv_xor_b32 v7, v7, v6\nv_lshlrev_b32 v7, 4, v7\nv_lshrrev_b32 v5, 2, v2")
    p(f"s_and_b32 s20, s14, 1\ns_lshl_b32 s20, s20, 4\nv_add_u32 v6, s20, v5\nv_mul_u32_u24 v6, {WROWB}, v6\nv_add_u32 v6, v6, v7"); stash('VHV', 6)
    p(f"s_lshl_b32 s20, s14, 4\nv_add_u32 v6, s20, v5\nv_mul_u32_u24 v6, {ROWB}, v6\nv_add_u32 v6, v6, v7"); stash('VH2', 6)
    p("v_lshrrev_b32 v5, 2, v3\nv_and_b32 v6, 3, v3")
    p("v_lshrrev_b32 v7, 1, v5\nv_lshl_add_u32 v7, v1, 1, v7\nv_and_b32 v7, 3, v7")
    p("v_lshl_add_u32 v9, v8, 2, v5\nv_lshlrev_b32 v9, 7, v9\nv_lshrrev_b32 v10, 1, v1\nv_lshl_add_u32 v9, v10, 12, v9\nv_lshl_add_u32 v9, v6, 3, v9")
    for u in range(4):
        p(f"v_xor_b32 v11, {u}, v7\nv_lshl_add_u32 v{RA+u}, v11, 5, v9")
        p(f"v_add_u32 v{RA+4+u}, {WINS[1]*16384}, v{RA+u}\nv_add_u32 v{RA+8+u}, {WINS[2]*16384}, v{RA+u}")
    p(f"v_lshl_add_u32 v9, v1, 2, v5\nv_lshlrev_b32 v9, 6, v9\nv_lshl_add_u32 v9, v6, 3, v9")
    p(f"v_lshl_add_u32 v11, v8, 5, v9"); stash('RAH0', 11)
    p(f"v_xor_b32 v11, 32, v11"); stash('RAH1', 11)
    p(f"v_lshlrev_b32 v11, 11, v10\nv_lshl_add_u32 v9, v8, 4, v3\nv_lshl_add_u32 v11, v9, 4, v11"); stash('VS', 11)
    p(f"v_lshlrev_b32 v11, 3, v3\nv_cmp_eq_u32 vcc, v5, v1\ns_lshl_b32 s20, s19, 3\ns_add_u32 s20, s20, {WS_STATS}\nv_add_u32 v11, s20, v11\nv_cndmask_b32 v11, {OOB}, v11, vcc"); stash('VST', 11)
    p(f"s_lshr_b32 s20, s2, 2\ns_and_b32 s23, s2, 3\ns_lshl_b32 s62, s20, 2\ns_add_u32 s62, s62, s14\ns_mul_i32 s62, s62, {8*ROWB}\ns_sub_u32 s62, s62, {4*ROWB}")
    p(f"v_lshrrev_b32 v9, 3, v2\nv_mul_u32_u24 v9, {ROWB}, v9\nv_and_b32 v11, 7, v2\nv_lshl_add_u32 v9, v11, 4, v9\nv_add_u32 v9, s62, v9"); stash('VK', 9)
    p(f"v_lshlrev_b32 v9, 11, v1\nv_lshl_add_u32 v9, v5, 7, v9\nv_lshl_add_u32 v9, v6, 3, v9\ns_lshl_b32 s62, s14, 5\ns_add_u32 s62, s62, {SIDE}\nv_add_u32 v9, s62, v9"); stash('SA', 9)
    p(f"s_lshl_b32 s66, s14, 4\nv_add_u32 v13, s66, v3\ns_lshl_b32 s23, s23, 7\nv_add_u32 v9, s23, v13\nv_lshlrev_b32 v{SHA}, 3, v9\nv_lshlrev_b32 v{SHA+1}, 3, v13")
    p(f"s_lshl_b32 s20, s20, 6\ns_sub_u32 s20, {4080 + WS_KVT}, s20\nv_lshlrev_b32 v9, 12, v9\nv_lshlrev_b32 v11, 4, v1\nv_sub_u32 v9, v9, v11\nv_add_u32 v9, s20, v9"); stash('SS', 9)
    import kfin
    p(f"s_lshl_b32 s20, s17, 4\ns_add_u32 s20, s20, s18\ns_lshl_b32 s20, s20, 3\nv_and_b32 v9, 7, v2\nv_add_u32 v9, s20, v9\nv_lshrrev_b32 v10, 3, v2\ns_lshl_b32 s23, s14, 3\nv_add_u32 v10, s23, v10")
    p(f"v_mul_u32_u24 v11, {ROWB}, v9\nv_lshl_add_u32 v11, v10, 4, v11"); stash('XL', 11)
    p(f"v_and_b32 v9, 15, v9\nv_lshlrev_b32 v9, 4, v9\nv_lshl_add_u32 v9, v10, 8, v9\ns_and_b32 s20, s91, 0xffffff00\ns_add_u32 s20, s20, 256\nv_add_u32 v9, s20, v9"); stash('XS', 9)
    kfin.addresses(p, stash)
    XA = 186
    p(f"v_lshrrev_b32 v5, 3, v3\nv_lshlrev_b32 v5, 10, v5\nv_and_b32 v6, 7, v3\nv_lshl_add_u32 v5, v6, 7, v5\nv_add_u32 v5, s22, v5")
    p(f"v_lshrrev_b32 v6, 1, v3\nv_xor_b32 v6, v6, v1\nv_lshl_add_u32 v{XA}, v6, 4, v5\nv_xor_b32 v{XA+1}, 64, v{XA}")
    ONE, M = 160, [172, 176]
    for k in range(4): p(f"v_mov_b32 v{ONE+k}, 0x3f803f80")
    p("v_lshlrev_b32 v5, 3, v1\nv_sub_u32 v5, v3, v5\nv_and_b32 v6, 1, v3\nv_lshlrev_b32 v6, 4, v6\ns_movk_i32 s20, 0x3f80\nv_lshlrev_b32 v6, v6, s20\nv_ashrrev_i32 v5, 1, v5")
    for h in range(2):
        for dd in range(4): p(f"v_cmp_eq_i32 s[{64 + 2*(dd&1)}:{65 + 2*(dd&1)}], {dd - 8*h}, v5\nv_cndmask_b32 v{164+4*h+dd}, 0, v6, s[{64 + 2*(dd&1)}:{65 + 2*(dd&1)}]")
    p(f"s_mul_i32 s67, s18, {288*ROWB}")
    for k in range(8): p(f"v_accvgpr_write_b32 a{SEL[0]+k}, v{164+k}")
    p(f"v_lshlrev_b32 v{VL}, 4, v2\nv_cmp_eq_u32 vcc, 0, v2\nv_cndmask_b32 v{VFL}, {OOB}, v2, vcc")

    NCH = 243
    p2chunks = []
    for s_ in range(NP1):
        p2chunks += [('f', b, 0, s_) for b in range(4)]
        if s_ % 2 == 1: p2chunks.append(('h', 0, s_ - 1))
    early = [(0, k) for k in range(NP1, 8)] + [(1, 0), (1, 1), (0, 8)] + [(1, k) for k in range(2, 6)]
    late = [(1, k) for k in range(6, 9)]
    for b in range(NB1): p2chunks += [('f', b, par, k) for par, k in early]
    for b in range(NB1): p2chunks += [('f', b, par, k) for par, k in late]
    for b in range(NB1, 4): p2chunks += [('f', b, par, k) for par, k in early + late]
    p2chunks += [('h', 0, k) for k in range(NP1 // 2 * 2, 8, 2)] + [('h', 1, k) for k in (0, 2, 4, 6)] + [('h', 0, 8)]
    assert len(p2chunks) == 81 and NP1 % 2 == 0
    def dma_instrs(n):
        c = n & 3; pos = (n >> 2) % NPOS
        pre = []
        if c == 0: pre.append(I(f"s_add_u32 m0, s52, {pos*16384}"))
        off = f"offset:{1024*c} " if c else ""
        if n < 144:
            pp, ks = n // 36, (n % 36) // 2
            if c == 0: pre.append(I(f"s_add_u32 s62, s{21 if ks < 18 - 2*ROT else 72}, {128*pp + ks*KROW}"))
            d = I(f"buffer_load_dwordx4 v{V1A if c < 2 else V1B}, s[{28 if c % 2 == 0 else 32}:{31 if c % 2 == 0 else 35}], s62 offen {off}{wflags} lds")
        elif n < 162:
            ks = n - 144
            pre.append(I(f"s_add_u32 s62, s{94 if ks < 18 - 2*ROT else 73}, {ks*KROW + 3072 - 1024*c}"))
            d = I(f"buffer_load_dwordx4 v{VHV}, s[40:43], s62 offen {off}{wflags} lds")
        else:
            kind = p2chunks[n - 162]
            if kind[0] == 'f':
                _, b, par, s = kind
                base = (56 if s < 8 else 57) + (20 if par else 0)
                pre.append(I(f"s_add_u32 s62, s{base}, {(32*s*ROWB if s < 8 else 0) + 128*b + 3072 - 1024*c}"))
                d = I(f"buffer_load_dwordx4 v{V2V}, s[36:39], s62 offen {off}{wflags} lds")
            else:
                _, par, s = kind
                base = 59 if s == 8 else (60 if par else 61)
                pre.append(I(f"s_add_u32 s62, s{base}, {(32*s*ROWB if s < 8 else 0) + 3072 - 1024*c}"))
                d = I(f"buffer_load_dwordx4 v{VH2}, s[36:39], s62 offen {off}{wflags} lds")
        return pre, d
    def pf_gu(pp, part=0, v=VPF):
        return [I(f"s_add_u32 s66, s{54 if pp < 4 else 55}, {(128*pp if pp < 4 else 0) + part*PL*WROWB}"),
                I(f"buffer_load_dword a{DUM}, v{v}, s[40:43], s66 offen offset:3072 {wflags}", tag='dummy')]
    dma = {}
    def meanm(ks):
        for tt in range(2):
            p.wl(xr[(tt, ks)])
            c = "0" if ks == 0 else f"v[{M[tt]}:{M[tt]+3}]"
            p(f"{MF} v[{M[tt]}:{M[tt]+3}], v[{ONE}:{ONE+3}], v[{X(tt,ks)}:{X(tt,ks)+3}], {c}")
    setup = p.seq[setup0:]; del p.seq[setup0:]
    cuts = [int(len(setup) * f) for f in XCUT]
    for k, i in enumerate(setup):
        if cuts and k >= cuts[0] and i.kind == 'valu' and setup[k - 1].kind == 'valu' and 'vcc' not in i.uses and len(xq) > XKEEP:
            cuts.pop(0); xdma(xq.pop(0)); xdma(xq.pop(0))
        p.add(i)
    if dbg: p('s_waitcnt lgkmcnt(0)')
    def mean1(tt, ks):
        p.wl(xr[(tt, ks)])
        p(f"{MF} v[{M[tt]}:{M[tt]+3}], v[{ONE}:{ONE+3}], v[{X(tt,ks)}:{X(tt,ks)+3}], {'0' if ks == 0 else f'v[{M[tt]}:{M[tt]+3}]'}")
    def negmean(tt):
        p(f"v_mul_f32 v{MT[tt]}, 0x3ae38e39, v{M[tt]}")
        p(f"v_cvt_pk_bf16_f32 v{NM4[tt]}, v{MT[tt]}, v{MT[tt]}\nv_lshlrev_b32 v{NM4[tt]}, 16, v{NM4[tt]}\nv_xor_b32 v{NM4[tt]}, 0x80000000, v{NM4[tt]}")
        for k in range(1, 4): p(f"v_mov_b32 v{NM4[tt]+k}, v{NM4[tt]}")
    cen = []
    for k, (tt, ks) in enumerate([(tt, ks) for tt in range(2) for ks in range(18)]):
        t = TMP + 8 * (k % 2); x = X(tt, ks)
        mf = [I(f"{MF} v[{t+4*h}:{t+4*h+3}], a[{SEL[h]}:{SEL[h]+3}], v[{x}:{x+3}], v[{NM4[tt]}:{NM4[tt]+3}]") for h in range(2)]
        cv = [I(f"v_cvt_pk_bf16_f32 v{x+e}, v{t+2*e}, v{t+2*e+1}") for e in range(4)]
        cen.append((tt, ks, mf, cv))
    for tt in range(2):
        for cb in range(9):
            while (cb, 2 * tt + 1) not in xd: xdma(xq.pop(0))
            p.wv(xd[(cb, 2 * tt + 1)])
            for ks in (2 * cb, 2 * cb + 1):
                xr[(tt, ks)] = p(f"ds_read_b128 v[{X(tt,ks)}:{X(tt,ks)+3}], v{XA+(ks&1)} offset:{((9*tt + cb) % 16)*2048}")
            if tt == 0 and cb == XLAST - 1:
                while xq: xdma(xq.pop(0))
            elif xq: xdma(xq.pop(0))
            if tt == 0 and cb == XLAST:
                xdma(16); xdma(17)
                p(f"s_mov_b32 s21, s54\ns_mov_b32 s22, s55\ns_mov_b32 s23, 0")
                for n in range(NPRO):
                    pre, d = dma_instrs(n)
                    for i in pre: p.add(i)
                    dma[n] = p.add(d)
                for i in pf_gu(0, 0, 4) + (pf_gu(1, 0, 4) if PF1 else []): p.add(i)
                p(f"s_mov_b32 s92, s72\ns_mov_b32 s93, s73\ns_mov_b32 s94, {D*8}\ns_movk_i32 s20, 0x1000")
                shk = [p(f"buffer_load_dwordx2 a[{SHK+2*n}:{SHK+2*n+1}], v{SHA if n < 2 else SHA + 1}, s[92:95], {'0' if n < 2 else 's20'} offen offset:{512*(n%2)}") for n in range(3)]
                p("s_add_u32 s72, s23, s54\ns_add_u32 s73, s23, s55\ns_mov_b32 s94, s22")
                p(f"s_and_b32 s20, s2, 3\ns_lshl_b32 s20, s20, 8\ns_and_b32 s23, s2, 0xfc\ns_add_u32 s20, s20, s23\ns_add_u32 s20, s20, {WS_KF}\ns_cmp_eq_u32 s14, 0\ns_cselect_b32 s17, s20, {OOB}")
            if cb: mean1(tt, 2 * cb - 2); mean1(tt, 2 * cb - 1)
        mean1(tt, 16); mean1(tt, 17)
        if tt == 0:
            while xq: xdma(xq.pop(0))
        negmean(tt)
        for k in range(18 * tt, 18 if tt == 0 else 18 + CAH):
            for i in cen[k][2]: p.add(i)
            if k:
                for i in cen[k - 1][3]: p.add(i)
        if tt == 0:
            for i in cen[17][3]: p.add(i)
            cen[17] = cen[17][:3] + ([],)
    C0 = 18 + CAH

    frags = []
    def lds(n):
        c = n & 3; pos = (n >> 2) % NPOS; w = pos // 3
        return w, (pos - WINS[w]) * 16384 + c * 1024
    def order(nu, first):
        o = [(ks, u) for ks in range(GU) for u in range(nu)] if first else [(ks, u) for u in range(nu) for ks in range(GU)]
        o += [(ks, u) for ks in range(GU, 18 - GU) for u in range(nu)]
        return o + [(ks, u) for u in range(nu) for ks in range(18 - GU, 18)]
    for pp in range(4):
        for ks, u in order(4, pp == 0):
            for mat in range(2):
                n = pp * 36 + ks * 2 + mat; win, off = lds(n)
                frags.append(dict(n=n, ra=RA + win * 4 + u, o1=off, o2=off + 8192,
                                  mf=[(ACC(u, mat, tt), f"v[{X(tt,ks)}:{X(tt,ks)+3}]", ks == 0) for tt in range(2)], key=('p', pp, ks, u, mat)))
    for ks, u in order(2, False):
        for mat in range(2):
            n = 144 + ks; win, off = lds(n)
            frags.append(dict(n=n, ra=RAH3[win] + u, o1=off + mat * 8192, o2=off + mat * 8192 + 4096,
                              mf=[(ACC(u, mat, tt), f"v[{X(tt,ks)}:{X(tt,ks)+3}]", ks == 0) for tt in range(2)], key=('p', 4, ks, u, mat)))
    seen = set(); lastq = {}
    for ci, kind in enumerate(p2chunks):
        n = 162 + ci; win, off = lds(n)
        if kind[0] == 'f':
            _, b, par, s = kind
            items = [(b, u, par, s, RA + win * 4 + u, off, off + 8192) for u in range(4)]
        else:
            _, par, s = kind
            ks2 = [(par, s), (par, s + 1)] if s < 8 else [(0, 8), (1, 8)]
            items = [(4, u, pr, ss, RAH3[win] + u, off + m * 8192, off + m * 8192 + 4096) for m, (pr, ss) in enumerate(ks2) for u in range(2)]
        for b, u, par, s, ra, o1, o2 in items:
            frags.append(dict(n=n, ra=ra, o1=o1, o2=o2, mf=[(ACC2(b, u, tt), f"a[{H(tt,s,par)}:{H(tt,s,par)+3}]", (b, u) not in seen) for tt in range(2)], key=('q', b, par, s, u)))
            seen.add((b, u)); lastq[(b, u)] = len(frags) - 1
    NF = len(frags); NM = 2 * NF
    fidx = {f['key']: k for k, f in enumerate(frags)}
    first_read = {}; last_use = {}
    for k, f in enumerate(frags):
        first_read.setdefault(f['n'], 2 * (k - LA) - 1); last_use[f['n']] = 2 * k + 1
    b0 = PB - 2 * LA - 2
    while b0 % 8 != 5: b0 -= 1
    bars = sorted(set(list(earlybars) + list(range(b0, NM - 2 * LA, PB))))
    reads = [[] for _ in range(NM)]; post = [[] for _ in range(NM)]
    rd = {}
    def mkread(k, h):
        f = frags[k]; b = 4 * (k % NBUF) + 2 * h
        return I(f"ds_read_b64_tr_b16 a[{b}:{b+1}], v{f['ra']} offset:{f['o1'] if h == 0 else f['o2']}")
    need0 = [n for n in range(NCH) if first_read[n] <= bars[0]]
    p.wv([dma[n] for n in need0]); p("s_barrier")
    if dbg: p("s_memrealtime s[64:65]\ns_memtime s[100:101]\ns_waitcnt lgkmcnt(0)\ns_mov_b32 s22, s100")
    for k in range(LA):
        for h in range(2): rd[(k, h)] = p.add(mkread(k, h))
    for i in cen[C0 - 1][3]: p.add(i)
    for k in range(LA, NF):
        for h in range(2):
            rd[(k, h)] = mkread(k, h); reads[2 * (k - LA) + h].append(rd[(k, h)])
    p.wl(rd[(WE - 1, 1)])
    for k in range(WE, NF, WE):
        post[2 * k - 1].append(waitL(rd[(min(k + WE - 1, NF - 1), 1)]))
    streams = []
    lastg = -2; dsched = {}; sdm = {}; sgap = {}
    sideat = [min(b for b in bars if b >= x) for x in SD]
    for n in range(NPRO, NCH):
        e = (min(b for b in bars if b >= last_use[n - C]) + 1) if n >= C else 0
        behind = 8 * (n - C + PB // 8) < lastg
        g = max(e + 2, lastg + (4 if behind else 8))
        while g % 4 != 2: g += 1
        pg = lastg; lastg = g
        pre, d = dma_instrs(n); dma[n] = d; dsched[n] = g
        if n & 3 == 0 and sideat and pg >= sideat[0]:
            u = 3 - len(sideat); sideat.pop(0)
            so = 's70' if u < 2 else 's10'
            sdm[u] = [I(f"buffer_load_dwordx4 v{VT_}, s[48:51], {so} offen {kvflags} lds"),
                      I(f"buffer_load_dwordx4 v{VT_}, s[84:87], {so} offen offset:1024 {kvflags} lds"),
                      I(f"buffer_load_dwordx4 v{VT_}, s[48:51], {so} offen {kvflags} lds")]
            pre = [unst('VK', VT_), I("s_mov_b32 m0, s96")] + ([I(f"s_add_u32 s70, s70, 128")] if u == 1 else []) + [sdm[u][0], I(f"v_add_u32 v{VT_}, {4*ROWB}, v{VT_}"), sdm[u][1],
                   I(f"s_mov_b32 m0, {SIDE + 8192}"), I(f"v_add_u32 v{VT_}, s71, v{VT_}"), sdm[u][2]] + pre
            sgap[u] = g
        streams.append([[i, max(e, pg + 1), g - 2] for i in pre] + [[d, g, g]])
    young = []
    for bi, b in enumerate(bars):
        nxt = bars[bi + 1] if bi + 1 < len(bars) else NM + 100
        need = [n for n in range(NCH) if b < first_read[n] <= nxt]
        for n in need: assert n < NPRO or dsched[n] < b, (n, b)
        if need: post[b].append(waitV([dma[n] for n in need])); young.append(dsched.get(max(need), -1))
        post[b].append(I("s_barrier"))
    snap = lambda g: (min([y + 1 for y in young if y + 1 >= g] + [10**6]) if SNAP else g)
    TLBG = [snap(g) for g in TLBG]; NG = (snap(NG[0]), NG[1])
    st = []
    for k in range(C0, 36):
        tt, ks, mf, cv = cen[k]
        fu = 2 * min(fidx[('p', 0, ks, u, 0)] for u in range(4)) + tt
        e = max(0, int(13 * (k - C0)) - 8)
        st += [[i, e, min(fu - 12, 214)] for i in mf]
        if k > C0: st += [[i, e, min(pfu - 3, 218)] for i in cen[k - 1][3]]
        pfu = fu
    st += [[i, 0, 221] for i in cen[35][3]]
    st += [[[I("s_cmp_lt_u32 s18, 2"), I("s_cbranch_scc1 K1_stat"), I("K1_statback:")], 0, 226]]
    streams.append(st)
    st = []; g = PFG[0]
    for pp in range(2 if PF1 else 1, 5):
        for part in range(rows // PL):
            st += [[i, g, g + 12] for i in pf_gu(pp, part)]; g += PFG[1] if pp > 1 else PFG[1] // 3
    assert g < 690
    streams.append(st)
    st = []; g = PFG[2]
    for part in range(nld // PLD):
        while any(x - 14 <= g <= x + 4 for x in sgap.values()): g += 4
        st += [[unst('VPD', VT_), g, g + 4], [I(f"s_add_u32 s3, s67, {part*PLD*128}"), g, g + 4], [I(f"buffer_load_dword a{DUM}, v{VT_}, s[36:39], s3 offen offset:3072 {wflags}", tag='dummy'), g, g + 8]]
        g += PFG[3]
    assert g < dsched[162] - 30, g
    streams.append(st)
    if tlb:
        T = [(44, [], 's88'), (44, ["s_and_b32 s23, s2, 3", "s_lshl_b32 s23, s23, 19"], 's23'), (36, [], 's56'), (36, [f"s_add_u32 s23, s76, {255*ROWB}"], 's23'), ]
        st = []
        for (r, pre, so), g in zip(T[:len(TLBG)], TLBG):
            st += [[I(x), g, g + 30] for x in pre] + [[I(f"buffer_load_dword a{DUM}, off, s[{r}:{r+3}], {so}{' offset:3072' if r == 36 else ''}", tag='dummy'), g, g + 30]]
        streams.append(st)
    streams.append([[unst('VHV', VHV), 700, dsched[144] - 10]])
    streams.append([[unst('V2V', V2V), dsched[162] - 30, dsched[162] - 8], [unst('VH2', VH2), 0, dsched[162] - 6], [unst('VS', VS), 0, dsched[162] - 4]])
    g = first_read[144]
    streams.append([[unst('RAH0', 8), g - 24, g - 4], [unst('RAH1', 9), 0, g - 4]] + [[I(f"v_add_u32 v{RAH3[w]+u}, {WINS[w]*16384}, v{8+u}"), 0, g - 3] for w in (1, 2) for u in range(2)])
    for n in range(3):
        bg = min(b for b in bars if b >= SC[n]); post[bg].insert(0, waitV(sdm[n] + shk))
        e = bg + 1; dl = e + 125
        KD, VD, W, KF, O, VF = 10, TMP, TMP + 6, TMP + 10, TMP + 4, TMP + 15
        rq = [I(f"ds_read_b64_tr_b16 v[{KD+2*k}:{KD+2*k+1}], v8 offset:{[0, 512, 2048][k]}") for k in range(3)] + [I(f"ds_read_b64_tr_b16 v[{VD+2*k}:{VD+2*k+1}], v8 offset:{1024+512*k}") for k in range(2)]
        L = [unst('SA', 8)] + rq
        L += [I(f"v_accvgpr_read_b32 v{O}, a{SHK+2*n}"), I(f"v_accvgpr_read_b32 v{O+1}, a{SHK+2*n+1}"),
              I(f"v_lshlrev_b32 v{W}, 16, v{O}"), I(f"v_and_b32 v{W+1}, 0xffff0000, v{O}"), I(f"v_lshlrev_b32 v{W+2}, 16, v{O+1}"), I(f"v_and_b32 v{W+3}, 0xffff0000, v{O+1}"), waitL(rq[-1])]
        unp = lambda e_: I(f"v_lshlrev_b32 v{KF+e_%5}, 16, v{KD+e_//2}" if e_ % 2 == 0 else f"v_and_b32 v{KF+e_%5}, 0xffff0000, v{KD+e_//2}")
        L += [unp(1), unp(2), unp(3)]
        for o in range(8):
            e_ = o + 4; d = O + o % 2
            L += [unp(e_), I(f"v_mul_f32 v{d}, v{W+3}, v{KF+(e_-3)%5}"), I(f"v_fmac_f32 v{d}, v{W+2}, v{KF+(e_-2)%5}"), I(f"v_fmac_f32 v{d}, v{W+1}, v{KF+(e_-1)%5}"),
                  I(f"v_lshlrev_b32 v{VF}, 16, v{VD+o//2}" if o % 2 == 0 else f"v_and_b32 v{VF}, 0xffff0000, v{VD+o//2}"),
                  I(f"v_fmac_f32 v{d}, v{W}, v{KF+e_%5}"), I(f"v_mul_f32 v{d}, v{d}, v{VF}")]
            if o % 2: L.append(I(f"v_cvt_pk_bf16_f32 v{11-o//2}, v{O+1}, v{O}"))
        L += [unst('SS', VF), I(f"buffer_store_dwordx4 v[8:11], v{VF}, s[44:47], {['0', 's74', 's75'][n]} offen {stflags}")]; kvst = L[-1]; kvdl = dl
        streams.append([[i, e, (min(b for b in bars if b >= SD[n + 1]) - 1 if (n < 2 and k < 13) else dl)] for k, i in enumerate(L)])
    hst = {}; hld = {}; hdone = {}; fus = {}; hldg = {}
    for pp in range(5):
        nu = 4 if pp < 4 else 2
        st = []
        for u in range(nu):
            e = 2 * fidx[('p', pp, 17, u, 1)] + 1 + 3
            if pp < 4 and (pp < 3 or u < 2): dl = 2 * fidx[('p', pp + 1, 0, u, 0)] - 2
            elif pp == 3: dl = e + 60
            else: dl = 2 * fidx[('q', 0, 0, 0, 0)] + 40
            unit = pp * 4 + u; s = unit // 2; hh = unit % 2
            for tt in range(2):
                for r in range(4): st.append([I(f"v_mul_f32 v{HT(u,tt)+r}, v{ACC(u,0,tt)+r}, v{ACC(u,1,tt)+r}"), e, dl])
            dl2 = dl + 30 if pp < 4 else dl + 6
            for tt in range(2):
                t = HT(u, tt)
                st += [[I(f"v_cvt_pk_bf16_f32 v{t}, v{t}, v{t+1}"), e, dl2], [I(f"v_cvt_pk_bf16_f32 v{t+2}, v{t+2}, v{t+3}"), e, dl2]]
            for tt in range(2):
                t = HT(u, tt)
                st += [[I(f"v_accvgpr_write_b32 a{H(tt,s)+2*hh}, v{t}"), e, dl2], [I(f"v_accvgpr_write_b32 a{H(tt,s)+2*hh+1}, v{t+2}"), e, dl2]]
            if u % 2 == 1:
                if u == 1: hs = [[I(f"s_add_u32 s68, s88, {pp*4096}"), e, dl2]]
                for tt in range(2):
                    hst[(tt, s)] = I(f"buffer_store_dwordx4 a[{H(tt,s)}:{H(tt,s)+3}], v{VL}, s[44:47], s68 offen offset:{((s%2)*2+tt)*1024} {hsf}")
                    hg_ = (HSG if pp < 3 else 12) * ((u // 2) * 2 + tt); e0_ = 2 * fidx[('p', pp, 17, 1, 1)] + 30
                    hs.append([hst[(tt, s)], max(dl2 + 2, e0_ + hg_), max(dl2 + 10, e0_ + hg_ + 8)])
        hdone[pp] = hs[-1][2]
        streams += [st, hs]
    assert all(not (g - 14 <= XG[1] + 2 * XSG + 10 and XG[1] <= g) for g in sgap.values()) and all(not (g <= XG[1] + 2 * XSG + 10 and XG[1] <= g + 30) for g in TLBG[1::2])
    xc = [I(f"buffer_load_dwordx4 a[{XC+4*z}:{XC+4*z+3}], v{VT_}, s[24:27], 0 offen offset:{512*z}") for z in range(3)]
    streams.append([[unst('XL', VT_), XG[0], XG[0] + 4]] + [[i, XG[0], XG[0] + 30] for i in xc] +
                   [[I(t), XG[0], NG[0] - 2] for t in ("s_mov_b32 s24, s78", "s_mov_b32 s25, s79", "s_mov_b32 s26, 256")] +
                   [[unst('XS', VT_), XG[1], XG[1] + 4], [I("s_movk_i32 s3, 0x2000"), XG[1], XG[1] + 4], [I("s_cmp_eq_u32 s14, 0"), XG[1], XG[1] + 4]][:2] +
                   [[[I("s_cmp_eq_u32 s14, 0"), I(f"s_cselect_b32 s23, 0x4000, {OOB}")], XG[1], XG[1] + 6], [waitV(xc), XG[1], XG[1] + 6]] +
                   [[I(f"buffer_store_dwordx4 a[{XC+4*z}:{XC+4*z+3}], v{VT_}, s[44:47], {['0', 's3', 's23'][z]} offen sc1"), XG[1] + XSG * z, XG[1] + XSG * z + 10] for z in range(3)])
    nl_ = I(f"buffer_load_dword v{VFV}, off, s[24:27], 0 sc1")
    streams.append([[nl_, NG[0], NG[0] + 10], [[waitV(nl_), I(f"v_readfirstlane_b32 s78, v{VFV}")], NG[1], NG[1] + 4],
                    [[I("s_cmp_eq_u32 s78, 0"), I("s_cbranch_scc1 K1_slowN"), I("K1_backN:")], NG[1] + 1, NG[1] + 6]])
    for k, (ss, pl) in enumerate([(range(0, 4), 1), (range(4, 6), 2), (range(6, 9), 4)]):
        bg = min(b for b in bars if b >= max(hdone[pl] + WAITG[k], kvdl + 50 if k == 1 else 0))
        post[bg].insert(0, waitV([hst[(tt, s)] for s in ss for tt in range(2)] + ([kvst] if k == 1 else [])))
        if wbl:
            wb = I("buffer_wbl2 sc1"); wb.kind = "other"; mk = I(f"buffer_load_dword a{DUM}, v{VFL}, s[92:95], 0 offen", tag='dummy')
            streams.append([[[I("s_cmp_lg_u32 s14, 0"), I(f"s_cbranch_scc1 K1_nowb{k}"), wb, I(f"K1_nowb{k}:"), mk], bg + 1, bg + 3], [waitV(mk), bg + wbl, bg + wbl + 2]])
            bg += wbl + 2
        streams.append([[I(f"v_add_u32 v{VFV}, 1, v{VFV}"), bg - 20, bg], [I(f"buffer_store_dword v{VFV}, v{VFL}, s[44:47], s90 offen sc1"), bg + 1, bg + 6]] +
                       ([[I(f"buffer_store_dword v{VFV}, v{VFL}, s[44:47], s17 offen sc1"), bg + 1, bg + 12]] if k == 1 else []))
        g0 = bg + SKEW[k]
        if k < 2: g0 = snap(g0)
        g1 = g0 + CHK[k]
        fl = I(f"buffer_load_dword v{VFD}, off, s[44:47], s91 sc1")
        st = [[fl, g0, g0 + 6], [[waitV(fl), I(f"v_readfirstlane_b32 s69, v{VFD}")], g1, g1 + 2], [I(f"s_add_u32 s79, s78, {k+1}"), g1, g1 + 2],
              [[I("s_sub_u32 s69, s69, s79"), I(f"s_cmp_gt_u32 s69, {3-k}"), I(f"s_cbranch_scc1 K1_slow{k}"), I(f"K1_back{k}:")], g1 + 1, g1 + 3]]
        assert g1 + 3 < 1700
        hg = HLG if k < 2 else 8
        for s in ss:
            if s % 2 == 0: st.append([I(f"s_add_u32 s69, s89, {(s//2)*4096}"), g1 + 1 + hg * (s - ss[0]), g1 + 4 + hg * (s - ss[0])])
            for tt in range(2):
                hld[(tt, s)] = I(f"buffer_load_dwordx4 a[{H(tt,s,1)}:{H(tt,s,1)+3}], v{VL}, s[44:47], s69 offen offset:{((s%2)*2+tt)*1024} sc1")
                hldg[s] = g1 + 8 + hg * (s - ss[0]) + hg // 2 * tt
                st.append([hld[(tt, s)], g1 + 1 + hg * (s - ss[0]) + hg // 2 * tt, g1 + 8 + hg * (s - ss[0]) + hg // 2 * tt])
        streams.append(st)
    for s in range(9):
        fu = min(k for k, f in enumerate(frags) if f['key'][0] == 'q' and f['key'][2] == 1 and f['key'][3] == s)
        post[2 * fu - 1].append(waitV([hld[(0, s)], hld[(1, s)]])); fus[s] = (2 * fu, hldg[s])
    HL, HE, KVA = 160, TMP, [H(0, 0), H(1, 0)]
    kvfree = 2 * max(k for k, f in enumerate(frags) if f['key'][0] == 'q' and f['key'][2] == 0 and f['key'][3] < 4) + 2
    assert KG[0] >= kvfree and KG[0] > KVP[1] + 8
    fin = []
    if merge:
        fl = I(f"buffer_load_dword v{V1A}, v{VHV}, s[44:47], 0 offen sc1")
        st = [[unst('VKF', VHV), KVP[0] - 10, KVP[0]], [fl, KVP[0], KVP[0] + 8], [[waitV(fl), I(f"v_subrev_u32 v{V1A}, s78, v{V1A}")], KVP[1], KVP[1] + 2],
              [I(f"v_add_u32 v{V1A}, -2, v{V1A}"), 0, KVP[1] + 3], [I(f"v_cmp_ne_u32 vcc, 0, v{V1A}"), 0, KVP[1] + 4],
              [[I("s_nop 3"), I("s_cbranch_vccnz K1_slowK"), I("K1_backK:")], KVP[1] + 2, KVP[1] + 6]]
        if SSG: streams.append([[I(f"v_lshlrev_b32 v{VFD}, 3, v{VL}"), SSG - 8, SSG], [I(f"buffer_load_dword a{DUM}, v{VFD}, s[80:83], s97 offen", tag='dummy'), SSG, SSG + 10]])
        st2 = [[I("s_add_u32 s3, s97, 4096"), HG[0] - 8, HG[0]]]
        for k in range(8):
            so = 's97' if k < 4 else 's3'; z = k % 4
            fin.append(I(f"buffer_load_dwordx4 v[{HL+4*k}:{HL+4*k+3}], v{VL}, s[80:83], {so} offen offset:{1024*z}")); st2.append([fin[-1], HG[0] + HG[1] * k, HG[0] + HG[1] * k + 8])
            fin.append(I(f"buffer_load_dwordx4 a[{KVA[k//4]+4*z}:{KVA[k//4]+4*z+3}], v{VL}, s[44:47], {so} offen offset:{1024*z} sc1")); st.append([fin[-1], KG[0] + KG[1] * k, KG[0] + KG[1] * k + 8])
        g = HG[0] + 8 * HG[1] + 90
        st2.append([waitV(fin[0::2]), g, g + 2])
        for k in range(8):
            r = HL + 4 * k; t = 208 + 4 * k; n = V1A + (k & 1); z = k % 4
            L = ([f"v_readfirstlane_b32 s{92+(k&1)}, v{r+4}"] if z < 3 else []) + [f"v_mov_b32_dpp v{n}, v{r} wave_shl:1 row_mask:0xf bank_mask:0xf"]
            L += [f"v_alignbyte_b32 v{t+e}, v{r+e+1}, v{r+e}, 2" for e in range(3)]
            L += ([f"v_writelane_b32 v{n}, s{92+(k&1)}, 63"] if z < 3 else []) + [f"v_alignbyte_b32 v{t+3}, v{n}, v{r+3}, 2"]
            if z == 0: L += [f"v_readfirstlane_b32 s23, v{r}", f"v_mov_b32 v{V1A + 1 - (k & 1)}, 0", "s_lshl_b32 s23, s23, 16", f"v_writelane_b32 v{V1A + 1 - (k & 1)}, s23, 1", f"v_accvgpr_write_b32 a{kfin.PT[k // 4] + 3}, v{V1A + 1 - (k & 1)}"]
            st2 += [[I(x), g, 1830] for x in L]
        ba, bb_ = bars[-2], bars[-1]
        assert ba > last_use[4 * 55 + 3] and bb_ > last_use[4 * 58 + 3] and (55 % NPOS, 58 % NPOS) == (1, 4)
        st += [[unst('SA0', VHV), 1750, ba], [I(f"v_add_u32 v{V2V}, s19, v{VHV}"), dsched[242] + 1, ba], [waitV(fin[1::2]), ba - 4, ba]]
        st += [[i, ba + 1 + 4 * k, ba + 6 + 4 * k] for k, i in enumerate(kfin.writes(0, HL, KVA, VHV))]
        st += [[i, bb_ + 1 + 3 * k, bb_ + 5 + 3 * k] for k, i in enumerate(kfin.writes(1, HL, KVA, V2V))]
        F0 = I(f"buffer_load_dword v{kfin.T+4}, v{kfin.FA}, s[44:47], 0 offen sc1")
        streams += [st, st2]; F0 = None
        if CPG:
            streams.append([[I(t), CPG, CPG + 20] for t in ("s_lshl_b32 s23, s14, 13", f"v_lshlrev_b32 v{V1B}, 3, v{VL}", f"v_add_u32 v{V1B}, s23, v{V1B}", f"v_min_u32 v{V1B}, KF_BYTES, v{V1B}")] +
                           [[[I("s_getpc_b64 s[92:93]"), I("KF_pc:"), I("s_add_u32 s92, s92, KF_start-KF_pc"), I("s_addc_u32 s93, s93, 0")], CPG, CPG + 24],
                            [I(f"global_load_dword a{DUM}, v{V1B}, s[92:93]", tag='dummy'), CPG, CPG + 30]])
    PK = 192; prev = 0; assert WS_KVT == 0
    pst = []
    for cnt, (b, u) in enumerate(sorted(lastq, key=lambda x: lastq[x])):
        e = max(2 * lastq[(b, u)] + 1 + 3, min(prev + PSG, NM - 10)); prev = e
        k = PK + 4 * (cnt % (4 if merge else 8))
        a0, a1 = ACC2(b, u, 0), ACC2(b, u, 1)
        pst.extend([[I(t), e, e + 20] for t in [
            f"v_cvt_pk_bf16_f32 v{k}, v{a0}, v{a0+1}", f"v_cvt_pk_bf16_f32 v{k+1}, v{a0+2}, v{a0+3}",
            f"v_cvt_pk_bf16_f32 v{k+2}, v{a1}, v{a1+1}", f"v_cvt_pk_bf16_f32 v{k+3}, v{a1+2}, v{a1+3}",
            f"s_add_u32 s{70+cnt%6}, s{58 if b < 4 else 53}, {((8*b if b < 4 else 0)+2*u)*2048}",
            f"v_permlane16_swap_b32 v{k}, v{k+2}", f"v_permlane16_swap_b32 v{k+1}, v{k+3}",
            f"buffer_store_dwordx4 v[{k}:{k+3}], v{VS}, s[44:47], s{70+cnt%6} offen {stflags}"]])
    streams.append(pst)
    if not useXC: rm = tuple(rm) + ('xc',)
    txt_ = lambda it: ' '.join(x.text for x in it[0]) if isinstance(it[0], list) else it[0].text
    if 'side' in rm:
        streams = [st for st in streams if not any(f"a{STASH['SA']}" in txt_(it) for it in st)]
        streams = [[it for it in st if not any(it[0] is x for u in sdm for x in sdm[u])] for st in streams]
    if 'hx' in rm:
        hx = list(hst.values()) + list(hld.values())
        streams = [[it for it in st if not any(it[0] is x for x in hx) and 's91' not in txt_(it) and 's90' not in txt_(it) and 's17' not in txt_(it)] for st in streams]
        for st in streams:
            for it in st:
                if 'K1_slow' in txt_(it): it[0] = [x for x in it[0] if x.kind == 'label']
    if 'pf' in rm: streams = [[it for it in st if 'a120' not in txt_(it)] for st in streams]
    if 'c1' in rm: streams = [[it for it in st if not re.search('alignbyte|dpp|lane', txt_(it))] for st in streams]
    if 'pst' in rm: streams = [[it for it in st if not re.search('store_dwordx4 v', txt_(it))] for st in streams]
    if 'cen' in rm: streams = [[it for it in st if not re.search(r'a\[(196|200):', txt_(it))] for st in streams]
    if 'dsw' in rm: streams = [[it for it in st if isinstance(it[0], list) or it[0].kind != 'ds_w'] for st in streams]
    if 'fin' in rm: streams = [[it for it in st if not any(it[0] is x for x in fin)] for st in streams]
    if 'xc' in rm: streams = [[it for it in st if isinstance(it[0], list) or not re.search(r'a\[2(22|26|30):', it[0].text)] for st in streams]
    for st in streams:
        for k in range(1, len(st)): st[k][1] = max(st[k][1], st[k - 1][1])
        for k in range(len(st) - 2, -1, -1): st[k][2] = min(st[k][2], st[k + 1][2])
        assert all(a <= b for _, a, b in st), [(x.text if not isinstance(x, list) else 'bundle', a, b) for x, a, b in st if a > b][:3]
    for mi, mg in enumerate(marks):
        post[mg] += [I(f"s_memtime s[100:101]"), I("s_waitcnt lgkmcnt(0)"), I(f"s_sub_u32 s100, s100, s22"), I(f"v_writelane_b32 v0, s100, {mi}")]
    kind = lambda i: 'bundle' if isinstance(i, list) else i.kind
    big = lambda i: kind(i) in ('dma', 'perm', 'vm_st', 'vm_ld')
    cost = lambda i: 2 if (big(i) or kind(i) == 'bundle') else 1
    gaps = [[] for _ in range(NM)]
    over = 0
    reserved = set(dsched.values())
    slack = lambda s: min(it[2] - 1.5 * k for k, it in enumerate(s[:40]))
    for g in range(NM):
        used = len(reads[g]) + len(post[g])
        if g + 1 in reserved: used = max(used, 2)
        while True:
            cand = [s for s in streams if s and s[0][1] <= g]
            if not cand: break
            forced = [s for s in cand if s[0][2] <= g]
            if forced: s = min(forced, key=lambda x: x[0][2])
            else:
                def fits(s):
                    it = s[0][0]
                    if kind(it) == 'mfma': return not any(kind(x) == 'mfma' for x in gaps[g]) and g + 1 not in reserved and (used >= 2 or len(cand) == 1)
                    if big(it):
                        return (not gaps[g] and not post[g] and len(reads[g]) == 1 and g > 0 and len(reads[g-1]) + len(post[g-1]) + len(gaps[g-1]) == 1
                                and g not in reserved and g + 1 not in reserved)
                    if kind(it) in ('ds_r', 'ds_w') and gaps[g]: return False
                    if used < 2: return True
                    return used < 3 and any(x[2] - g < (k + 1) * 1.0 - 1 for k, x in enumerate(s[:40]))
                ok = [s for s in cand if fits(s)]
                if not ok: break
                s = min(ok, key=slack)
            it = s.pop(0)[0]
            if big(it) and len(reads[g]) == 1 and g > 0 and len(reads[g-1]) + len(post[g-1]) + len(gaps[g-1]) == 1 and not gaps[g]:
                reads[g-1] += reads[g]; reads[g] = []; used -= 1
            gaps[g].append(it)
            if kind(it) == 'mfma': over += max(0, used - len(post[g]) - 2); used = len(post[g])
            else: used += cost(it)
        if used > 2: over += used - 2
    for g in range(NM):
        f = frags[g // 2]; acc, bop, z = f['mf'][g % 2]
        b = 4 * ((g // 2) % NBUF)
        p(f"{MF} v[{acc}:{acc+3}], a[{b}:{b+3}], {bop}, {'0' if z else f'v[{acc}:{acc+3}]'}")
        for i in reads[g] + gaps[g] + post[g]:
            for x in (i if isinstance(i, list) else [i]): p.add(x)
    for s in streams:
        for it in s: p.add(it[0])
    def stamps(q):
        q("s_memtime s[100:101]\ns_waitcnt lgkmcnt(0)\ns_sub_u32 s100, s100, s22")
        stamp_end(q, 6, 1, 14, 4, extra=64)
        q("v_mov_b32 v16, s13\nv_mov_b32 v17, s100\nv_mov_b32 v18, s63\nv_mov_b32 v19, s12\ns_add_u32 s92, s92, 0x20000\nbuffer_store_dwordx4 v[16:19], v20, s[88:91], s92 offen")
        q("s_lshl_b32 s92, s2, 2\ns_add_u32 s92, s92, s14\ns_lshl_b32 s92, s92, 8\ns_add_u32 s92, s92, 0x4100000\nv_lshlrev_b32 v20, 2, v2\nbuffer_store_dword v0, v20, s[88:91], s92 offen")
    if not merge or stop:
        if dbg: stamps(p)
        p("K1_done:\ns_endpgm")
        seq, npad = p.finish(check=not rm)
    else:
        kfin.stage(p, dbg, STASH, F0)
        seq, npad = p.finish()
        seq = seq + kfin.rest(dbg, oflags, useXC=useXC, **fin_kw)
    o = Prog()
    def spin(name, back, load, dst, test):
        o(f"{name}:\ns_add_u32 s63, s63, 1\ns_cmp_ge_u32 s63, 0x40000\ns_cbranch_scc1 {back}")
        o(f"s_sleep 2\n{load}\ns_waitcnt vmcnt(0)\n{dst}\ns_nop 0\n{test}\ns_cbranch_scc1 {name}\ns_branch {back}")
    spin("K1_slowN", "K1_backN", nl_.text, f"v_readfirstlane_b32 s78, v{VFV}", "s_cmp_eq_u32 s78, 0")
    for k in range(3):
        spin(f"K1_slow{k}", f"K1_back{k}", f"buffer_load_dword v{VFD}, off, s[44:47], s91 sc1", f"v_readfirstlane_b32 s69, v{VFD}", f"s_sub_u32 s69, s69, s79\ns_cmp_gt_u32 s69, {3-k}")
    if merge:
        o("K1_slowK:\ns_add_u32 s63, s63, 1\ns_cmp_ge_u32 s63, 0x40000\ns_cbranch_scc1 K1_backK")
        o(f"s_sleep 2\nbuffer_load_dword v{V1A}, v{VHV}, s[44:47], 0 offen sc1\ns_waitcnt vmcnt(0)\nv_subrev_u32 v{V1A}, s78, v{V1A}\nv_add_u32 v{V1A}, -2, v{V1A}\nv_cmp_ne_u32 vcc, 0, v{V1A}\ns_nop 4\ns_cbranch_vccnz K1_slowK\ns_branch K1_backK")
    o("K1_stat:\ns_nop 7\ns_cmp_eq_u32 s18, 1\ns_cbranch_scc1 K1_stat1")
    for tt in range(2):
        if tt: o("K1_stat1:")
        A_, q, T = TMP + 8, TMP + 12, TMP + 14
        for ks in range(18):
            o(f"{MF} v[{A_}:{A_+3}], v[{X(tt,ks)}:{X(tt,ks)+3}], v[{X(tt,ks)}:{X(tt,ks)+3}], {'0' if ks == 0 else f'v[{A_}:{A_+3}]'}")
        o(f"v_and_b32 v{T}, 3, v{LANE}\nv_cmp_eq_u32 vcc, 1, v{T}\nv_cndmask_b32 v{q}, v{A_}, v{A_+1}, vcc\nv_cmp_eq_u32 vcc, 2, v{T}\nv_cndmask_b32 v{q}, v{q}, v{A_+2}, vcc\nv_cmp_eq_u32 vcc, 3, v{T}\nv_cndmask_b32 v{q}, v{q}, v{A_+3}, vcc")
        o(f"v_add_f32 v{T}, v{MT[tt]}, v{NM4[tt]}\nv_mul_f32 v{T}, v{T}, v{T}\nv_mul_f32 v{q}, 0x3ae38e39, v{q}\nv_sub_f32 v{q}, v{q}, v{T}\nv_max_f32 v{q}, 0, v{q}")
        o(f"v_cvt_pk_bf16_f32 v{q}, v{q}, v{q}\nv_lshlrev_b32 v{q}, 16, v{q}\nv_add_f32 v{q}, 0x3727c5ac, v{q}")
        o(f"v_cvt_pk_bf16_f32 v{q}, v{q}, v{q}\nv_lshlrev_b32 v{q}, 16, v{q}\nv_sqrt_f32 v{q}, v{q}")
        o(f"v_cvt_pk_bf16_f32 v{q}, v{q}, v{q}\nv_lshlrev_b32 v{q}, 16, v{q}\nv_rcp_f32 v{T+1}, v{q}\nv_xor_b32 v{T}, 0x80000000, v{NM4[tt]}")
        o(f"v_accvgpr_read_b32 v{q}, a{STASH['VST']}\nbuffer_store_dwordx2 v[{T}:{T+1}], v{q}, s[44:47], 0 offen offset:{128*tt} sc1\ns_nop 1\ns_branch K1_statback")
    seq2, _ = o.finish()
    seq = seq + seq2
    nbytes = sum(4 if (i.kind in ('wait', 'barrier', 'nop', 'branch') or (i.kind == 'salu' and not re.search(r'(0x[0-9a-f]+|\b\d{3,}\b)', i.text))) else 8 for i in seq if i.kind not in ('label', 'dir'))
    txt = render(seq).replace("K1_NLINES", str(nbytes // 128 - 16)).replace("KF_BYTES", "K1_done-KF_start")
    stats = dict(fus=fus, hdone=hdone, n=len(seq), pads=npad, over=over, bytes=nbytes)
    if merge and not stop: return khead(NAME + "_kernel") + txt, kd(NAME + "_kernel", 512, 256), "; @launch grid=(256,1,1) block=(256,1,1) lds=163840", stats
    return khead("k1_kernel") + txt, kd("k1_kernel", 512, 256), f"; @launch kernel=k1_kernel grid=(256,1,1) block=(256,1,1) lds=163840", stats
if __name__ == "__main__":
    a, b, c, st = gen_k1()
    import sys
    print(st, file=sys.stderr)
    print(a)
```

```python
from asmfw import *
from common import *

HC1, XR, CHSZ = 4160, 8320, 12928
YB, YP = 8 * CHSZ, 2112
K2_LDS = YB + 8 * YP
SETS = [[0, 3, 4, 7], [1, 2, 5, 6]]

def conv_body(p, hf, dbg=False):
    tiles = SETS[hf]; mx = max(tiles)
    ACC, A, B = 0, 0, 0
    ACC = 16; A = 32; B = 64
    AB = [8, 9, 10, 11]; BB = 12; KB = 13; YA = 14
    def rdA(i, rho):
        o = 128 * (i & 1) + 16 * rho; r = A + 4 * i
        a = p(f"ds_read2_b32 v[{r}:{r+1}], v{AB[i>>1]} offset0:{o} offset1:{o+1}")
        b = p(f"ds_read2_b32 v[{r+2}:{r+3}], v{AB[i>>1]} offset0:{o+2} offset1:{o+3}")
        return b
    def rdB(j, rho):
        u = 8 * j - rho; r = B + 4 * j
        return p(f"ds_read_b128 v[{r}:{r+3}], v{BB} offset:{3584 - 64*u}")
    opA, opB = {}, {}
    for i in range(mx + 1):
        opA[i] = rdA(i, 0); opB[mx - i] = rdB(mx - i, 0)
    first = set()
    for rho in range(8):
        for i in range(mx + 1):
            js = sorted([n - i for n in tiles if n - i >= 0], reverse=True)
            for j in js:
                n = i + j; t = tiles.index(n); acc = ACC + 4 * t
                p.wl([opA[i], opB[j]])
                c = f"v[{acc}:{acc+3}]" if t in first else "0"
                first.add(t)
                p(f"v_mfma_f32_16x16x32_bf16 v[{acc}:{acc+3}], v[{A+4*i}:{A+4*i+3}], v[{B+4*j}:{B+4*j+3}], {c}")
            if rho < 7:
                opA[i] = rdA(i, rho + 1); opB[mx - i] = rdB(mx - i, rho + 1)
    kv = [p(f"ds_read_b64 v[{32+2*t}:{33+2*t}], v{KB} offset:{3584 - 512*n}") for t, n in enumerate(tiles)]
    for t, n in enumerate(tiles):
        p.wl(kv[t]); a = ACC + 4 * t; k = 32 + 2 * t
        p(f"v_and_b32 v44, 0xffff0000, v{k+1}\nv_lshlrev_b32 v45, 16, v{k+1}\nv_and_b32 v46, 0xffff0000, v{k}\nv_lshlrev_b32 v47, 16, v{k}")
        for r in range(4): p(f"v_fmac_f32 v{a+r}, v{44+r}, v15")
        p(f"v_cvt_pk_bf16_f32 v{48+2*t}, v{a}, v{a+1}\nv_cvt_pk_bf16_f32 v{49+2*t}, v{a+2}, v{a+3}")
        p(f"ds_write_b64 v{YA}, v[{48+2*t}:{49+2*t}] offset:{512*t}")
    p("s_waitcnt lgkmcnt(0)")
    if dbg: stamp_end(p, 12, 2, 28, 16, extra=94)
    p("s_barrier\ns_endpgm")

def gen_k2(nsplit=8, rflags="", dbg=False, usedot=False, oflags="", xfirst=1, otouch=0):
    out = khead("k2_kernel")
    p = Prog()
    p("s_cmp_ge_u32 s2, 144\ns_cbranch_scc1 K2_done")
    p(f"s_load_dwordx2 s[4:5], s[0:1], {KA_Q}")
    p(f"s_load_dwordx4 s[8:11], s[0:1], {KA_SSMK}")
    p(f"s_load_dwordx2 s[6:7], s[0:1], {KA_OUT}")
    p(f"s_load_dwordx2 s[12:13], s[0:1], {KA_WS}")
    if dbg: stamp_begin(p)
    p("v_lshrrev_b32 v1, 6, v0\nv_and_b32 v2, 63, v0")
    p("v_readfirstlane_b32 s28, v1")
    p("s_and_b32 s29, s2, 7\ns_lshr_b32 s30, s2, 3\ns_mul_i32 s29, s29, 9\ns_lshr_b32 s31, s30, 1\ns_add_u32 s29, s29, s31\ns_and_b32 s30, s30, 1")
    p("v_lshlrev_b32 v3, 4, v2")
    p("v_lshrrev_b32 v4, 4, v2\nv_and_b32 v5, 15, v2")
    p("s_cmp_ge_u32 s28, 8\ns_waitcnt lgkmcnt(0)\ns_cbranch_scc1 K2_red")
    srd(p, 16, 8, NX); srd(p, 20, 12, NX, WS_KVT); srd(p, 24, 10, D * 2)
    p("s_lshl_b32 s32, s29, 3\ns_add_u32 s32, s32, s28")
    p(f"s_lshl_b32 s33, s32, 12\ns_mul_i32 s34, s28, {CHSZ}")
    p(f"s_add_u32 m0, s34, {XR}")
    hl = []
    for z in range(4):
        p(f"buffer_load_dwordx4 v[{32+8*z}:{35+8*z}], v3, s[16:19], s33 offen offset:{1024*z}")
        hl.append(p(f"buffer_load_dword v{36+8*z}, v3, s[16:19], s33 offen offset:{1024*z+16}"))
    xd = [p(f"buffer_load_dwordx4 v3, s[20:23], s33 offen offset:{1024*z} lds") for z in range(4)]
    p("s_lshl_b32 s35, s32, 1\nv_mov_b32 v6, s35")
    dl = p("buffer_load_ushort v15, v6, s[24:27], 0 offen")
    p(f"v_and_b32 v6, 1, v5\nv_cmp_eq_u32 vcc, 1, v6\nv_mov_b32 v7, {HC1}\nv_cndmask_b32 v7, v7, 2, vcc")
    p("v_lshl_add_u32 v7, v5, 1, v7\nv_lshl_add_u32 v7, v4, 4, v7\nv_add_u32 v8, s34, v7")
    p("v_add_u32 v9, 1024, v8\nv_add_u32 v10, 2048, v8\nv_add_u32 v11, 3072, v8")
    p(f"s_add_u32 s36, s34, {XR+480}\nv_lshlrev_b32 v6, 5, v5\nv_sub_u32 v12, s36, v6\nv_lshl_add_u32 v12, v4, 4, v12")
    p(f"s_add_u32 s36, s34, {XR+504}\nv_sub_u32 v13, s36, v6\nv_lshlrev_b32 v7, 3, v4\nv_sub_u32 v13, v13, v7")
    p(f"s_mul_i32 s36, s28, {YP}\ns_add_u32 s36, s36, {YB}\nv_add_u32 v14, s36, v6\nv_add_u32 v14, v14, v7")
    p("v_mov_b32 v64, 0\nv_mov_b32 v65, 0\nv_mov_b32 v66, 0")
    p(f"v_lshlrev_b32 v6, 3, v2\nv_add_u32 v6, s34, v6\nds_write_b64 v6, v[64:65] offset:{XR+4096}")
    p("v_add_u32 v67, s34, v3")
    p.wv(hl[0])
    p("v_readfirstlane_b32 s37, v32\ns_lshl_b32 s37, s37, 16\nv_writelane_b32 v66, s37, 7")
    p("v_lshlrev_b32 v6, 2, v2\nv_add_u32 v6, s34, v6\ns_mov_b64 exec, 0xff")
    p(f"ds_write_b32 v6, v64\nds_write_b32 v6, v66 offset:{HC1}\ns_mov_b64 exec, -1")
    for z in range(4):
        p.wv(hl[z]); r = 32 + 8 * z
        p(f"ds_write_b128 v67, v[{r}:{r+3}] offset:{32+1024*z}")
        for e in range(4): p(f"v_alignbyte_b32 v{68+4*z+e}, v{r+e+1}, v{r+e}, 2")
        p(f"ds_write_b128 v67, v[{68+4*z}:{71+4*z}] offset:{HC1+32+1024*z}")
    p("s_waitcnt vmcnt(0) lgkmcnt(0)")
    p("v_lshlrev_b32 v15, 16, v15")
    if dbg: p("s_memrealtime s[94:95]\ns_waitcnt lgkmcnt(0)")
    p("s_cmp_eq_u32 s30, 1\ns_cbranch_scc1 K2_conv1")
    seq, _ = p.finish(); out += render(seq)
    p = Prog(); conv_body(p, 0, dbg); seq, _ = p.finish(); out += render(seq)
    p = Prog(); p("K2_conv1:"); conv_body(p, 1, dbg); seq, _ = p.finish(); out += render(seq)
    p = Prog()
    p("K2_red:")
    srd(p, 16, 12, 128 * AR_SZ, WS_AR); srd(p, 20, 4, NX); srd(p, 24, 12, S * 8, WS_STATS); srd(p, 40, 6, NX)
    p("s_sub_u32 s28, s28, 8")
    p("s_mov_b32 s32, 0x7430\ns_cmp_eq_u32 s30, 1\ns_cselect_b32 s32, 0x6521, s32\ns_lshr_b32 s33, s28, 1\ns_lshl_b32 s33, s33, 2\ns_lshr_b32 s32, s32, s33\ns_and_b32 s32, s32, 15")
    p("s_lshl_b32 s32, s32, 8\ns_and_b32 s33, s28, 1\ns_lshl_b32 s33, s33, 7\ns_add_u32 s32, s32, s33")
    p(f"s_lshl_b32 s33, s29, 11\ns_lshr_b32 s34, s32, 7\ns_mul_i32 s34, s34, {AR_SZ}\ns_add_u32 s33, s33, s34\ns_add_u32 s33, s33, {AR_P}\ns_mov_b32 s44, s33")
    PB = 32
    def pl(j, z, sreg): return p(f"buffer_load_dwordx4 v[{PB+4*j}:{PB+4*j+3}], v3, s[16:19], s{sreg} offen offset:{1024*z} {rflags}")
    ld = {}; buf = {}
    def xloads():
        p(f"s_mul_i32 s35, s32, {ROWB}\ns_lshl_b32 s36, s29, 4\ns_add_u32 s35, s35, s36\ns_add_u32 s36, s35, {64*ROWB}")
        p(f"v_mul_u32_u24 v6, {ROWB}, v2")
        xl = [p(f"buffer_load_dwordx4 v[{96+4*z}:{99+4*z}], v6, s[20:23], s{35+z} offen") for z in range(2)]
        p("v_lshlrev_b32 v7, 3, v2\ns_lshl_b32 s37, s32, 3")
        return [p(f"buffer_load_dwordx2 v[{104+2*z}:{105+2*z}], v7, s[24:27], s37 offen offset:{512*z}") for z in range(2)]
    if xfirst == 2: sl = xloads()
    if otouch == 1: p("s_mul_i32 s49, s32, 1152\nbuffer_load_dword v126, off, s[40:43], s49", tag='dummy')
    for j in range(nsplit):
        buf[(j, 0)] = j; ld[(j, 0)] = pl(j, 0, 33)
        p(f"s_add_u32 s33, s33, {16*AR_SZ}")
    if xfirst == 1: sl = xloads()
    for j in range(16 - nsplit):
        buf[(j, 1)] = nsplit + j; ld[(j, 1)] = pl(nsplit + j, 1, 44)
        p(f"s_add_u32 s44, s44, {16*AR_SZ}")
    later = range(16 - nsplit, nsplit)
    if xfirst == 0: sl = xloads()
    if otouch == 2: p("s_mul_i32 s49, s32, 1152\nbuffer_load_dword v126, off, s[40:43], s49", tag='dummy')
    p(f"v_lshrrev_b32 v8, 2, v5\nv_and_b32 v9, 3, v5\nv_mul_u32_u24 v8, {YP}, v8\nv_lshl_add_u32 v8, v9, 3, v8\nv_lshl_add_u32 v8, v4, 5, v8")
    p(f"s_lshl_b32 s38, s28, 8\ns_add_u32 s38, s38, {YB}\nv_add_u32 v8, s38, v8")
    p("s_mov_b32 s46, 0x00003f80\ns_mov_b32 s47, 0x3f800000\ns_mov_b32 s48, 0xbfb8aa3b")
    O = [16, 24]
    def accum(j, z):
        p.wv(ld[(j, z)])
        for e in range(4):
            src = PB + 4 * buf[(j, z)] + e
            if usedot:
                for hi in range(2):
                    c = "0" if j == 0 else f"v{O[z]+2*e+hi}"
                    p(f"v_dot2_f32_bf16 v{O[z]+2*e+hi}, v{src}, s{46+hi}, {c}")
            elif j == 0:
                p(f"v_lshlrev_b32 v{O[z]+2*e}, 16, v{src}\nv_and_b32 v{O[z]+2*e+1}, 0xffff0000, v{src}")
            else:
                p(f"v_lshlrev_b32 v14, 16, v{src}\nv_and_b32 v15, 0xffff0000, v{src}")
                p(f"v_add_f32 v{O[z]+2*e}, v{O[z]+2*e}, v14\nv_add_f32 v{O[z]+2*e+1}, v{O[z]+2*e+1}, v15")
    SS = [108, 116]
    def xpart(z):
        m, r = 104 + 2 * z, 105 + 2 * z
        for e in range(4):
            x = 96 + 4 * z + e; s0 = SS[z] + 2 * e
            p(f"v_lshlrev_b32 v{s0}, 16, v{x}\nv_and_b32 v{s0+1}, 0xffff0000, v{x}")
            p(f"v_sub_f32 v{s0}, v{s0}, v{m}\nv_sub_f32 v{s0+1}, v{s0+1}, v{m}\nv_cvt_pk_bf16_f32 v14, v{s0}, v{s0+1}")
            p(f"v_lshlrev_b32 v{s0}, 16, v14\nv_and_b32 v{s0+1}, 0xffff0000, v14")
            p(f"v_mul_f32 v{s0}, v{s0}, v{r}\nv_mul_f32 v{s0+1}, v{s0+1}, v{r}\nv_cvt_pk_bf16_f32 v14, v{s0}, v{s0+1}")
            p(f"v_lshlrev_b32 v{s0}, 16, v14\nv_and_b32 v{s0+1}, 0xffff0000, v14")
    def gpart(z):
        r = 105 + 2 * z
        p(f"v_mul_f32 v124, v{r}, v{r}\nv_mul_f32 v125, s48, v124")
        T = 10
        for h in range(2):
            for k in range(4): p(f"v_mul_f32 v{T+k}, v{O[z]+4*h+k}, v125")
            for k in range(4): p(f"v_exp_f32 v{T+k}, v{T+k}")
            for k in range(4): p(f"v_mul_f32 v{O[z]+4*h+k}, v{O[z]+4*h+k}, v124")
            for k in range(4): p(f"v_add_f32 v{T+k}, 1.0, v{T+k}")
            for k in range(4): p(f"v_rcp_f32 v{T+k}, v{T+k}")
            for k in range(4): p(f"v_mul_f32 v{O[z]+4*h+k}, v{O[z]+4*h+k}, v{SS[z]+4*h+k}")
            for k in range(4): p(f"v_mul_f32 v{O[z]+4*h+k}, v{O[z]+4*h+k}, v{T+k}")
            for k in range(4):
                x = 96 + 4 * z + 2 * h + k // 2
                p(f"v_lshlrev_b32 v{SS[z]+4*h+k}, 16, v{x}" if k % 2 == 0 else f"v_and_b32 v{SS[z]+4*h+k}, 0xffff0000, v{x}")
    nxt = list(later)
    for j in range(nsplit):
        accum(j, 0)
        if nxt:
            jj = nxt.pop(0); buf[(jj, 1)] = buf[(j, 0)]
            ld[(jj, 1)] = pl(buf[(jj, 1)], 1, 44)
            p(f"s_add_u32 s44, s44, {16*AR_SZ}")
    p.wv(sl[1])
    xpart(0); gpart(0); xpart(1)
    for j in range(nsplit): accum(j, 1)
    gpart(1)
    if dbg: p("s_memrealtime s[94:95]\ns_waitcnt lgkmcnt(0)")
    p("s_barrier")
    y = {(z, b): p(f"ds_read_b64_tr_b16 v[{32+4*z+2*b}:{33+4*z+2*b}], v8 offset:{4*YP*b + 128*z}") for z in range(2) for b in range(2)}
    for z in range(2):
        for e in range(4):
            if e % 2 == 0: p.wl(y[(z, e // 2)])
            s0 = SS[z] + 2 * e
            p(f"v_lshlrev_b32 v14, 16, v{32+4*z+e}\nv_and_b32 v15, 0xffff0000, v{32+4*z+e}")
            p(f"v_fmac_f32 v{s0}, v{O[z]+2*e}, v14\nv_fmac_f32 v{s0+1}, v{O[z]+2*e+1}, v15\nv_cvt_pk_bf16_f32 v{96+4*z+e}, v{s0}, v{s0+1}")
        p(f"buffer_store_dwordx4 v[{96+4*z}:{99+4*z}], v6, s[40:43], s{35+z} offen {oflags}")
    if dbg:
        p("s_add_u32 s28, s28, 8"); stamp_end(p, 12, 2, 28, 16, extra=94)
    p("K2_done:\ns_endpgm")
    seq, _ = p.finish(); out += render(seq)
    return out, kd("k2_kernel", 128, 128), f"; @launch kernel=k2_kernel grid=(144,1,1) block=(1024,1,1) lds={K2_LDS}"
if __name__ == "__main__":
    print(gen_k2()[0])
```

```python
from asmfw import *
from common import *
MF = "v_mfma_f32_16x16x32_bf16"
OOB = "0x40000000"
HC1, XR, CHSZ = 4160, 8320, 13440
LA_, LB_ = 114688, CHSZ
YB, YP = 81920, 2112
SETS = [[4, 7], [5, 6], [0, 1, 2, 3]]
NFIN = 27
LANE, VL, VFL, VFV = 2, 3, 1, 5
PS, XS, ST, O, CA = 16, 144, 240, 192, 160
AB, BB, KB, YA, YR, XO, FA, VST8 = 224, 232, 234, 236, 237, 238, 15, 12
DV = 8
T = 248
ZT, PT = 244, [248, 252]

def addresses(p, stash):
    p("s_cmp_eq_u32 s12, 1\ns_cselect_b32 s15, 0xdcba, 0xfe98\ns_cmp_eq_u32 s12, 2\ns_cselect_b32 s15, 0x6420, s15\ns_cselect_b32 s23, 1, 0".replace("0xdcba, 0xfe98", "0xdcba, s15").replace("s_cmp_eq_u32 s12, 1", "s_mov_b32 s15, 0xfe98\ns_cmp_eq_u32 s12, 1"))
    p("s_lshl_b32 s20, s14, 2\ns_lshr_b32 s15, s15, s20\ns_and_b32 s15, s15, 15")
    p(f"v_and_b32 v10, s23, v1\nv_add_u32 v10, s15, v10\nv_lshrrev_b32 v11, 1, v3\nv_lshl_add_u32 v10, v11, 4, v10\ns_mov_b32 s20, {AR_SZ}\nv_mul_lo_u32 v10, v10, s20")
    p(f"v_and_b32 v11, 1, v3\nv_lshl_add_u32 v10, v11, 7, v10\nv_add_u32 v10, {WS_AR + AR_F}, v10"); stash('FA', 10)
    p(f"v_lshrrev_b32 v9, 2, v3\nv_and_b32 v10, 3, v3\nv_mul_u32_u24 v9, {YP}, v9\nv_lshl_add_u32 v9, v10, 3, v9\nv_lshl_add_u32 v9, v1, 5, v9")
    p(f"s_add_u32 s23, s23, 8\ns_lshl_b32 s23, s14, s23\ns_add_u32 s23, s23, {YB}\nv_add_u32 v9, s23, v9"); stash('YR', 9)
    p(f"s_mul_i32 s20, s14, {CHSZ}\ns_add_u32 s62, s20, {LB_}\ns_add_u32 s20, s20, {LA_}\ns_cmp_eq_u32 s14, 3\ns_cselect_b32 s20, 0, s20\ns_sub_u32 s16x, s62, s20".replace("s16x", "s19"))
    p(f"v_cmp_eq_u32 vcc, 1, v11\nv_mov_b32 v9, {HC1}\nv_cndmask_b32 v9, v9, 2, vcc\nv_lshl_add_u32 v9, v3, 1, v9\nv_lshl_add_u32 v9, v1, 4, v9\nv_add_u32 v9, s20, v9"); stash('AB', 9)
    p(f"v_lshl_add_u32 v9, v2, 4, s20"); stash('SA0', 9)
    p(f"s_add_u32 s23, s20, {XR+480}\nv_lshlrev_b32 v9, 5, v3\nv_sub_u32 v10, s23, v9\nv_lshl_add_u32 v10, v1, 4, v10"); stash('BB', 10)
    p(f"s_add_u32 s23, s20, {XR+504}\nv_sub_u32 v10, s23, v9\nv_lshlrev_b32 v11, 3, v1\nv_sub_u32 v10, v10, v11"); stash('KB', 10)
    p(f"s_mul_i32 s23, s14, {2*YP}\ns_add_u32 s23, s23, {YB}\nv_add_u32 v10, s23, v9\nv_add_u32 v10, v10, v11"); stash('YA', 10)
    p(f"s_mul_i32 s23, s15, {128*ROWB}\ns_lshl_b32 s20, s11, 4\ns_add_u32 s23, s23, s20\nv_mul_u32_u24 v9, {ROWB}, v2\nv_add_u32 v9, s23, v9"); stash('XO', 9)
    for r in list(range(ZT, ZT + 4)) + [PT[0], PT[0] + 1, PT[0] + 2, PT[1], PT[1] + 1, PT[1] + 2]: p(f"v_accvgpr_write_b32 a{r}, 0")

def writes(ch, HL, KVA, ad):
    L = [f"ds_write_b128 v{ad}, a[{ZT}:{ZT+3}]", f"ds_write_b128 v{ad}, a[{PT[ch]}:{PT[ch]+3}] offset:{HC1}", f"ds_write_b128 v{ad}, a[{ZT}:{ZT+3}] offset:{XR+4096}"]
    for z in range(4):
        r = HL + 16 * ch + 4 * z; t = 208 + 16 * ch + 4 * z
        L += [f"ds_write_b128 v{ad}, v[{t}:{t+3}] offset:{HC1 + 32 + 1024*z}", f"ds_write_b128 v{ad}, v[{r}:{r+3}] offset:{32 + 1024*z}",
              f"ds_write_b128 v{ad}, a[{KVA[ch]+4*z}:{KVA[ch]+4*z+3}] offset:{XR + 1024*z}"]
    return [I(x) for x in L]

def mark(p, k): p(f"s_memrealtime s[100:101]\ns_waitcnt lgkmcnt(0)\nv_writelane_b32 v0, s100, {k}")
def flags(p): return p(f"buffer_load_dword v{T+4}, v{FA}, s[44:47], 0 offen sc1")

def stage(p, dbg, STASH, F0):
    if dbg: p("s_memrealtime s[100:101]\ns_waitcnt lgkmcnt(0)\ns_mov_b32 s22, s100")
    p("s_nop 0", tag='snap')
    p(f"v_add_u32 v{VFV}, 1, v{VFV}\ns_cmp_lt_u32 s16, {NFIN}\ns_cbranch_scc1 KF_start")
    p(f"s_waitcnt vmcnt(0)\ns_barrier\nbuffer_store_dword v{VFV}, v{VFL}, s[44:47], s90 offen sc1\ns_branch K1_fin")
    p("KF_start:", tag='restore')
    p(f"v_accvgpr_read_b32 v{FA}, a{STASH['FA']}")
    p(f"s_mul_i32 s53, s15, {AR_SZ}\ns_lshl_b32 s20, s11, 11\ns_add_u32 s53, s53, s20\ns_add_u32 s53, s53, {WS_AR + AR_P}\ns_movk_i32 s57, 0x5555\ns_mov_b32 s56, 0\ns_mov_b32 s61, 0")
    p(f"s_mul_i32 s58, s15, {AR_SZ}\ns_lshl_b32 s20, s11, 8\ns_add_u32 s58, s58, s20\ns_add_u32 s58, s58, {WS_AR + AR_X}\ns_add_u32 s59, s58, {64*AR_SZ}\ns_add_u32 s60, s58, {AR_SZ}\ns_add_u32 s68, s59, {AR_SZ}")
    p(f"v_lshrrev_b32 v13, 4, v{LANE}\ns_mov_b32 s20, {16*AR_SZ}\nv_mul_lo_u32 v13, v13, s20\nv_and_b32 v14, 15, v{LANE}\nv_lshl_add_u32 v13, v14, 4, v13")
    srd(p, 36, 8, D * 2); srd(p, 32, 98, NX)
    p(f"s_lshl_b32 s66, s15, 10\ns_add_u32 s66, s66, {WS_STATS}\ns_lshr_b32 s67, s97, 11\nv_lshlrev_b32 v{VST8}, 3, v{LANE}")
    p("s_mov_b32 s54, 0x00003f80\ns_mov_b32 s55, 0x3f800000\ns_waitcnt lgkmcnt(0)")
    for k, r in (('AB', AB), ('BB', BB), ('KB', KB), ('YA', YA), ('YR', YR), ('XO', XO)): p(f"v_accvgpr_read_b32 v{r}, a{STASH[k]}")
    p(f"v_add_u32 v{AB+4}, s19, v{AB}\nv_add_u32 v{BB+1}, s19, v{BB}\nv_add_u32 v{KB+1}, s19, v{KB}")
    for k in (1, 2, 3, 5, 6, 7): p(f"v_add_u32 v{AB+k}, {(k & 3)*1024}, v{AB + (k & 4)}")
    if F0 is None: flags(p)
    if dbg: mark(p, 40)
    p("s_cmp_eq_u32 s12, 1\ns_cbranch_scc1 KF_conv1\ns_cmp_eq_u32 s12, 2\ns_cbranch_scc1 KF_conv2")

def ready(p):
    p(f"v_subrev_u32 v{T+5}, s78, v{T+4}\nv_cmp_eq_u32 vcc, 4, v{T+5}\ns_nop 1\ns_lshr_b32 s20, vcc_lo, 16\ns_and_b32 s20, s20, vcc_lo\ns_lshr_b32 s23, s20, 1\ns_and_b32 s20, s20, s23")
    p("s_and_b32 s20, s20, s57\ns_andn2_b32 s57, s57, s20\ns_or_b32 s56, s56, s20")
def pick(p, nz, slot, defer=None):
    p(f"s_ff1_i32_b32 s20, s56\ns_bitset0_b32 s56, s20\ns_cmp_lt_i32 s20, 0\ns_mul_i32 s20, s20, {8*AR_SZ}\ns_cselect_b32 s23, {OOB}, s53\ns_cselect_b32 s20, 0, s20\ns_cselect_b32 s62, 0, {1 << slot}\ns_add_u32 s20, s20, s23\ns_or_b32 s61, s61, s62")
    if nz > 2: p(f"s_add_u32 s23, s20, {AR_SZ}")
    for z in range(nz):
        r = PS + 16 * slot + 4 * z
        last = I(f"buffer_load_dwordx4 v[{r}:{r+3}], v{VL}, s[44:47], s{20 if z < 2 else 23} offen offset:{1024*(z&1)} sc1")
        if defer is None: p.add(last)
        else: defer.append(last)
    return last
def acc(p, nz, slot, first=False):
    if 'noacc4' in HACK and nz == 4 and slot < 4: return
    for z in range(nz):
        for e in range(4):
            for hi in range(2):
                o = O + 8 * z + 2 * e + hi
                p(f"v_dot2_f32_bf16 v{o}, v{PS+16*slot+4*z+e}, s{54+hi}, {'0' if first else f'v{o}'}")

HACK = set()
def conv(p, tiles, hooks, fill, xlast):
    mx = max(tiles)
    A = lambda ch, i: 64 * ch + 4 * i
    B = lambda ch, j: 64 * ch + 32 + 4 * j
    mf = [(i, j) for i in range(mx + 1) for j in sorted([n - i for n in tiles if n - i >= 0], reverse=True)]
    if len(tiles) == 2:
        lo, hi = tiles; a = [(i, hi - i) for i in range(hi + 1)]; b = [(i, lo - i) for i in range(lo + 1)]; mf = []
        while a or b:
            if a: mf.append(a.pop(0))
            if b: mf.append(b.pop(0))
    def reads(ch, rho):
        L = []; ops = {}; need = []
        for i, j in mf:
            for x in (('A', i), ('B', j)):
                if x not in need: need.append(x)
        for kind, k in need:
            if kind == 'A':
                o = 128 * (k & 1) + 16 * rho; r = A(ch, k); ad = AB + 4 * ch + (k >> 1)
                L += [I(f"ds_read2_b32 a[{r}:{r+1}], v{ad} offset0:{o} offset1:{o+1}"), I(f"ds_read2_b32 a[{r+2}:{r+3}], v{ad} offset0:{o+2} offset1:{o+3}")]
            else:
                r = B(ch, k); L.append(I(f"ds_read_b128 a[{r}:{r+3}], v{BB+ch} offset:{3584 - 64*(8*k - rho)}"))
            if 'halfA' in HACK and kind == 'A' and rho > 0: L.pop(-2)
            ops[(kind, k)] = L[-1]
        return L, ops
    blocks = [(ch, rho) for rho in range(8) for ch in range(2)]
    L, ops = reads(*blocks[0])
    for i in L: p.add(i)
    if -1 in hooks: hooks[-1](p)
    first = set()
    for bi, (ch, rho) in enumerate(blocks):
        nL, nops = reads(*blocks[bi + 1]) if bi + 1 < len(blocks) else ([], {})
        for k, (i, j) in enumerate(mf):
            t = tiles.index(i + j); a = CA + 16 * ch + 4 * t
            if k % 3 == 0: p.wl([ops[x] for (u, v) in mf[k:k + 3] for x in (('A', u), ('B', v))])
            p(f"{MF} v[{a}:{a+3}], a[{A(ch,i)}:{A(ch,i)+3}], a[{B(ch,j)}:{B(ch,j)+3}], {f'v[{a}:{a+3}]' if (ch, t) in first else '0'}")
            first.add((ch, t))
            n = -(-len(nL) // (len(mf) - k))
            for _ in range(n): p.add(nL.pop(0))
            while fill and fill[0].kind == 'salu': p.add(fill.pop(0))
            if fill: p.add(fill.pop(0))
        ops = nops
        if bi in hooks: hooks[bi](p)
    while fill: p.add(fill.pop(0))
    p.wv(xlast[0])
    K = O + 16 if len(tiles) == 2 else PS
    KS = 2 * len(tiles)
    kv = {(ch, t): p(f"ds_read_b64 v[{K+KS*ch+2*t}:{K+KS*ch+2*t+1}], v{KB+ch} offset:{3584 - 512*n}") for ch in range(2) for t, n in enumerate(tiles)}
    for ch in range(2): p(f"v_lshlrev_b32 v{DV+2*ch}, 16, v{DV+2*ch}")
    for ch in range(2):
        for t, n in enumerate(tiles):
            p.wl(kv[(ch, t)]); a = CA + 16 * ch + 4 * t; k = K + KS * ch + 2 * t
            p(f"v_and_b32 v{T}, 0xffff0000, v{k+1}\nv_lshlrev_b32 v{T+1}, 16, v{k+1}\nv_and_b32 v{T+2}, 0xffff0000, v{k}\nv_lshlrev_b32 v{T+3}, 16, v{k}")
            for r in (0, 2): p(f"v_pk_fma_f32 v[{a+r}:{a+r+1}], v[{T+r}:{T+r+1}], v[{DV+2*ch}:{DV+2*ch+1}], v[{a+r}:{a+r+1}] op_sel_hi:[1,0,1]")
            p(f"v_cvt_pk_bf16_f32 v{k}, v{a}, v{a+1}\nv_cvt_pk_bf16_f32 v{k+1}, v{a+2}, v{a+3}")
            p(f"ds_write_b64 v{YA}, v[{k}:{k+1}] offset:{ch*YP + 512*t}")

def post(p, nz, dbg, oflags):
    if dbg: p("s_memrealtime s[100:101]\ns_waitcnt lgkmcnt(0)\ns_mov_b32 s81, s100")
    p("s_waitcnt lgkmcnt(0)\ns_barrier")
    Y = PS + 16 if nz == 4 else O + 24
    y = {(z, b): p(f"ds_read_b64_tr_b16 v[{Y+4*z+2*b}:{Y+4*z+2*b+1}], v{YR} offset:{4*YP*b + 128*z}") for z in range(nz) for b in range(2)}
    S_, C1 = CA, T
    p("s_mov_b32 s60, 0xbfb8aa3b")
    for z in range(nz):
        st_ = ST + 2 * z
        p(f"v_mul_f32 v{C1+z}, v{st_+1}, v{st_+1}\nv_mul_f32 v{st_+1}, v{st_+1}, v{C1+z}\nv_mul_f32 v{C1+z}, s60, v{C1+z}")
        for e in range(4):
            s0 = S_ + 8 * z + 2 * e
            p(f"v_lshlrev_b32 v{s0}, 16, v{XS+4*z+e}\nv_and_b32 v{s0+1}, 0xffff0000, v{XS+4*z+e}")
            p(f"v_pk_add_f32 v[{s0}:{s0+1}], v[{s0}:{s0+1}], v[{st_}:{st_+1}] op_sel_hi:[1,0] neg_lo:[0,1] neg_hi:[0,1]")
            p(f"v_pk_mul_f32 v[{s0}:{s0+1}], v[{s0}:{s0+1}], v[{st_}:{st_+1}] op_sel:[0,1] op_sel_hi:[1,1]")
        p.wl(y[(z, 1)])
        for e in range(4):
            s0 = S_ + 8 * z + 2 * e
            p(f"v_lshlrev_b32 v{T+6}, 16, v{Y+4*z+e}\nv_and_b32 v{T+7}, 0xffff0000, v{Y+4*z+e}\nv_pk_mul_f32 v[{s0}:{s0+1}], v[{s0}:{s0+1}], v[{T+6}:{T+7}]")
    if dbg: p("s_memrealtime s[100:101]\ns_waitcnt lgkmcnt(0)\ns_mov_b32 s82, s100")
    p(f"KF_loop{nz}:\ns_waitcnt vmcnt(0)\ns_mov_b32 s59, s61\ns_mov_b32 s61, 0")
    p(f"s_or_b32 s20, s56, s57\ns_cmp_eq_u32 s20, 0\ns_cbranch_scc1 KF_acc{nz}")
    p(f"s_add_u32 s63, s63, 1\ns_cmp_ge_u32 s63, 0x40000\ns_cbranch_scc1 KF_sum{nz}")
    ready(p); flags(p)
    for k in range(8):
        p(f"s_cmp_eq_u32 s56, 0\ns_cbranch_scc1 KF_acc{nz}\ns_bitcmp1_b32 s59, {k}\ns_cbranch_scc1 KF_p{nz}{k}")
        pick(p, nz, k); p(f"KF_p{nz}{k}:")
    p(f"KF_acc{nz}:")
    for k in range(8):
        p(f"s_bitcmp1_b32 s59, {k}\ns_cbranch_scc0 KF_a{nz}{k}"); acc(p, nz, k); p(f"KF_a{nz}{k}:")
    p(f"s_or_b32 s20, s56, s57\ns_or_b32 s20, s20, s61\ns_cmp_lg_u32 s20, 0\ns_cbranch_scc1 KF_loop{nz}\nKF_sum{nz}:")
    if dbg: p("s_memrealtime s[100:101]\ns_waitcnt lgkmcnt(0)\ns_mov_b32 s80, s100")
    p(f"s_mov_b32 s58, {64*ROWB}\ns_mov_b32 s59, {128*ROWB}\ns_mov_b32 s60, {192*ROWB}")
    E = PS
    for z in range(nz):
        o = O + 8 * z; s_ = S_ + 8 * z; xf = PS + 8; c = C1 + (z & ~1); sel = " op_sel:[0,1] op_sel_hi:[1,1]" if z & 1 else " op_sel_hi:[1,0]"
        for e in range(4): p(f"v_pk_mul_f32 v[{E+2*e}:{E+2*e+1}], v[{o+2*e}:{o+2*e+1}], v[{c}:{c+1}]{sel}")
        for e in range(4): p(f"v_exp_f32 v{E+2*e}, v{E+2*e}\nv_exp_f32 v{E+2*e+1}, v{E+2*e+1}\nv_pk_mul_f32 v[{o+2*e}:{o+2*e+1}], v[{o+2*e}:{o+2*e+1}], v[{s_+2*e}:{s_+2*e+1}]")
        for e in range(4): p(f"v_pk_add_f32 v[{E+2*e}:{E+2*e+1}], v[{E+2*e}:{E+2*e+1}], 1.0 op_sel_hi:[1,0]")
        for e in range(4): p(f"v_rcp_f32 v{E+2*e}, v{E+2*e}\nv_lshlrev_b32 v{xf+2*e}, 16, v{XS+4*z+e}\nv_rcp_f32 v{E+2*e+1}, v{E+2*e+1}\nv_and_b32 v{xf+2*e+1}, 0xffff0000, v{XS+4*z+e}")
        for e in range(4): p(f"v_pk_fma_f32 v[{xf+2*e}:{xf+2*e+1}], v[{o+2*e}:{o+2*e+1}], v[{E+2*e}:{E+2*e+1}], v[{xf+2*e}:{xf+2*e+1}]")
        for e in range(4): p(f"v_cvt_pk_bf16_f32 v{XS+4*z+e}, v{xf+2*e}, v{xf+2*e+1}")
        p(f"buffer_store_dwordx4 v[{XS+4*z}:{XS+4*z+3}], v{XO}, s[32:35], {'0' if z == 0 else f's{57+z}'} offen {oflags}")

PLAN2 = [(2, 0, 0, [0, 1, 2, 3, 4], [], 1), (7, 0, 1, []), (11, 1, 1, [5, 6], [0]), (12, 0, 0, [], [1, 2]), (13, 0, 0, [], [3, 4]), (15, 1, 1, [7])]
PLAN4 = [(5, 0, 0, [0, 1, 2, 3], [], 1), (8, 0, 1, []), (15, 1, 1, [4, 5, 6, 7], [0, 1, 2, 3])]
def rest(dbg, oflags, plan2=PLAN2, plan4=PLAN4, useXC=1, hack=()):
    HACK.clear(); HACK.update(hack)
    out = []
    for jt in range(3):
        st = {}; fill = []; xlast = []; nz = 4 if jt == 2 else 2
        def hook(first, rdy, fl, slots, accs=(), pub=0):
            def f(p):
                if pub:
                    if dbg: mark(p, 41)
                    p.wv(old); p("s_barrier")
                    if dbg: mark(p, 42)
                    p(f"buffer_store_dword v{VFV}, v{VFL}, s[44:47], s90 offen sc1")
                if first:
                    p(f"KF_chk{jt}:\nv_subrev_u32 v{T+5}, s78, v{T+4}\nv_add_u32 v{T+5}, -1, v{T+5}\nv_cmp_lt_u32 vcc, 3, v{T+5}\ns_nop 4\ns_cbranch_vccz KF_go{jt}")
                    p(f"s_add_u32 s63, s63, 1\ns_cmp_ge_u32 s63, 0x40000\ns_cbranch_scc1 KF_go{jt}"); p("s_nop 0", tag='snap'); flags(p); p(f"s_waitcnt vmcnt(0)\ns_branch KF_chk{jt}"); p(f"KF_go{jt}:", tag='restore')
                    ready(p)
                    if useXC:
                        for z in range(nz): fill.append(I(f"buffer_load_dwordx4 v[{XS+4*z}:{XS+4*z+3}], v13, s[44:47], s{[58, 59, 60, 68][z]} offen sc1"))
                    else:
                        srd(p, 28, 4, NX); p(f"s_mov_b32 s58, {64*ROWB}\ns_mov_b32 s59, {128*ROWB}\ns_mov_b32 s60, {192*ROWB}")
                        for z in range(nz): fill.append(I(f"buffer_load_dwordx4 v[{XS+4*z}:{XS+4*z+3}], v{XO}, s[28:31], {'0' if z == 0 else f's{57+z}'} offen"))
                    for z in range(nz): fill.append(I(f"buffer_load_dwordx2 v[{ST+2*z}:{ST+2*z+1}], v{VST8}, s[44:47], s66 offen offset:{512*z} sc1"))
                    for ch in range(2): fill.append(I(f"buffer_load_ushort v{DV+2*ch}, off, s[36:39], s67 offset:{2*ch}"))
                    xlast.append(fill[-1])
                elif not pub:
                    while fill: p.add(fill.pop(0))
                if rdy: p.wv(st['F']); ready(p)
                if fl: st['F'] = flags(p)
                for k in slots:
                    q = Prog(); st[k] = pick(q, nz, k); fill.extend(q.seq)
                if nz == 4 and accs:
                    assert set(accs) >= {0, 1}
                    while fill: p.add(fill.pop(0))
                for k in accs:
                    p.wv(st[k]); acc(p, nz, k, k == 0)
                if accs: p(f"s_andn2_b32 s61, s61, {sum(1 << k for k in accs)}")
            return f
        hooks = {x[0]: hook(k == 0, *x[1:]) for k, x in enumerate(plan4 if jt == 2 else plan2)}
        p = Prog()
        old = I("; (stores of the GEMM part)"); old.kind = 'vm_st'; p.add(old)
        if jt: p(f"KF_conv{jt}:")
        conv(p, SETS[jt], hooks, fill, xlast)
        if jt == 0: p("s_branch KF_post2")
        if jt == 1: p("KF_post2:")
        out += p.finish(check=False)[0]
        if jt:
            p = Prog(); post(p, nz, dbg, oflags)
            if jt == 1: p("s_branch K1_fin")
            out += p.finish(check=False)[0]
    p = Prog()
    p("K1_fin:")
    if dbg:
        p("s_memrealtime s[84:85]\ns_waitcnt vmcnt(0) lgkmcnt(0)\ns_memrealtime s[86:87]\ns_waitcnt lgkmcnt(0)")
        p(f"s_lshl_b32 s92, s2, 2\ns_add_u32 s92, s92, s14\ns_lshl_b32 s92, s92, 5\ns_add_u32 s92, s92, 0x4000000\nv_mov_b32 v20, 0")
        p("v_mov_b32 v16, s13\nv_mov_b32 v17, s64\nv_mov_b32 v18, s22\nv_mov_b32 v19, s81\nbuffer_store_dwordx4 v[16:19], v20, s[44:47], s92 offen")
        p("v_mov_b32 v24, s82\nv_mov_b32 v25, s80\nv_mov_b32 v26, s86\nv_mov_b32 v27, s63\nbuffer_store_dwordx4 v[24:27], v20, s[44:47], s92 offen offset:16")
        p("s_lshl_b32 s92, s2, 2\ns_add_u32 s92, s92, s14\ns_lshl_b32 s92, s92, 8\ns_add_u32 s92, s92, 0x4100000\nv_lshlrev_b32 v20, 2, v2\nbuffer_store_dword v0, v20, s[44:47], s92 offen")
    p("K1_done:\ns_endpgm")
    out += p.finish(check=False)[0]
    return out
```

```python
from build import build
from asmfw import *
from common import *
def probe2(path, a, b, mode, mult=8, k1kw={}, k2kw={}, n=256, stride=64, div=1):
    build(path, k1kw, k2kw, dbg=True)
    t = open(path).read()
    t = t.replace(NAME + "_kernel", "k1_kernel").replace("; @launch grid=", "; @launch kernel=k1_kernel grid=")
    p = Prog()
    p("s_cmp_ge_u32 s2, 1\ns_cbranch_scc1 K3_done")
    p(f"s_load_dwordx2 s[4:5], s[0:1], {KA_WS}\ns_waitcnt lgkmcnt(0)")
    p(f"s_add_u32 s4, s4, 0x4000000\ns_addc_u32 s5, s5, 0\ns_mov_b32 s6, 0x1000000\ns_mov_b32 s7, 0x20000")
    p(f"v_mul_u32_u24 v1, {stride}, v0\ns_mov_b32 s12, {a}\ns_mov_b32 s13, {b}")
    p("buffer_load_dword v2, v1, s[4:7], s12 offen\nbuffer_load_dword v3, v1, s[4:7], s13 offen\ns_waitcnt vmcnt(0)")
    p("v_lshlrev_b32 v4, 3, v0\nds_write_b64 v4, v[2:3]\ns_waitcnt lgkmcnt(0)\ns_barrier")
    p("v_readfirstlane_b32 s14, v0\ns_cmp_lg_u32 s14, 0\ns_cbranch_scc1 K3_done")
    p(f"v_mov_b32 v5, 0\nv_mov_b32 v6, -1\nv_mov_b32 v7, 0\nv_mov_b32 v8, 0\nv_mov_b32 v9, 0\ns_mov_b32 s15, {n}")
    p("K3_l2:\nds_read_b64 v[2:3], v8\ns_waitcnt lgkmcnt(0)\nv_min_u32 v6, v6, v2\nv_max_u32 v7, v7, v3\nv_sub_u32 v4, v3, v2\nv_add_u32 v5, v5, v4\nv_max_u32 v9, v9, v4\nv_add_u32 v8, 8, v8")
    p("s_sub_u32 s15, s15, 1\ns_cmp_lg_u32 s15, 0\ns_cbranch_scc1 K3_l2")
    if mode == "span": p("v_sub_u32 v5, v7, v6")
    elif mode == "mean": p(f"v_cvt_f32_u32 v5, v5\nv_mul_f32 v5, {1.0/n/div!r}, v5\nv_cvt_u32_f32 v5, v5")
    elif mode == "max": p(f"v_cvt_f32_u32 v5, v9\nv_mul_f32 v5, {1.0/div!r}, v5\nv_cvt_u32_f32 v5, v5")
    p(f"s_nop 1\nv_readfirstlane_b32 s6, v5\ns_memrealtime s[8:9]\ns_waitcnt lgkmcnt(0)\ns_mul_i32 s6, s6, {mult}\ns_min_u32 s6, s6, 50000")
    p("K3_loop:\ns_memrealtime s[10:11]\ns_waitcnt lgkmcnt(0)\ns_sub_u32 s10, s10, s8\ns_cmp_lt_u32 s10, s6\ns_cbranch_scc1 K3_loop")
    p("K3_done:\ns_endpgm")
    i = t.index(".amdgcn_target")
    t = t[:i] + "; @launch kernel=k3_kernel grid=(1,1,1) block=(256,1,1) lds=4096\n" + t[i:]
    i = t.index('.section .rodata')
    t = t[:i] + khead("k3_kernel") + render(p.seq) + t[i:] + kd("k3_kernel", 16, 16)
    open(path, "w").write(t)
if __name__ == "__main__":
    B = 0
    kw = dict(stride=128)
    probe2("p0.s", B, B + 24, "span", mult=0, **kw)
    probe2("p1.s", B, B + 24, "span", **kw)
    probe2("p2.s", B, B + 4, "mean", **kw)
    probe2("p3.s", B + 4, B + 8, "mean", **kw)
    probe2("p4.s", B, B + 8, "span", **kw)
    probe2("p5.s", B + 8, B + 24, "mean", n=216, **kw)
```
